```python
import torch

def _softmax(x, axis=-1):
    return torch.softmax(x, dim=axis)
def _gelu(x):
    return torch.nn.functional.gelu(x, approximate="tanh")
def _silu(x):
    return torch.nn.functional.silu(x)
def _sigmoid(x):
    return torch.sigmoid(x)
def _layernorm(x, axis=-1, eps=1e-5):
    m = x.mean(dim=axis, keepdim=True)
    v = x.var(dim=axis, keepdim=True, unbiased=False)
    return (x - m) / torch.sqrt(v + eps)
def _scatter_add(tgt, idx, src, axis=0):
    return tgt.clone().index_add_(axis, idx, src)
def _segment_sum(src, seg, n):
    out = torch.zeros((n,) + src.shape[1:], dtype=src.dtype)
    return out.index_add_(0, seg, src)
def _pad(x, pw):
    flat = tuple(v for pair in reversed(pw) for v in pair)
    return torch.nn.functional.pad(x, flat)

kernel_name = 'recurrent_scan__ssm_conv_s5__glu_gated_glu__prompt'

def setup_inputs():

    _w = (lambda a: (lambda t: t.to(torch.bfloat16) if t.is_floating_point() else t)(torch.as_tensor(a)))
    def _A_setup():
        B, S, D = 1, 2048, 448
        P = D
        Lambda_re = -0.5 * (lambda _x: torch.exp(torch.as_tensor(_x)))((lambda *s: torch.randn(*s, dtype=torch.bfloat16) * 0.2)(P))
        Lambda_im = (lambda *s: torch.randn(*s, dtype=torch.bfloat16) * 0.4)(P) * 1.0
        B_re = (lambda *s: torch.randn(*s, dtype=torch.bfloat16) * 0.2)(P, D) * (D ** -0.5)
        B_im = (lambda *s: torch.randn(*s, dtype=torch.bfloat16) * 0.2)(P, D) * (D ** -0.5)
        C_re = (lambda *s: torch.randn(*s, dtype=torch.bfloat16) * 0.2)(D, P) * (P ** -0.5)
        C_im = (lambda *s: torch.randn(*s, dtype=torch.bfloat16) * 0.2)(D, P) * (P ** -0.5)
        log_dt = (lambda *s: torch.randn(*s, dtype=torch.bfloat16) * 0.2)(P) * 0.3 - 2.0
        Dskip = (lambda *s: torch.randn(*s, dtype=torch.bfloat16) * 0.05)(D)
        return {
            "x": _w((lambda *s: torch.randn(*s, dtype=torch.bfloat16) * 0.05)(B, S, D)),
            "Lambda_re": _w(Lambda_re),
            "Lambda_im": _w(Lambda_im),
            "B_re": _w(B_re),
            "B_im": _w(B_im),
            "C_re": _w(C_re),
            "C_im": _w(C_im),
            "log_dt": _w(log_dt),
            "Dskip": _w(Dskip),
        }
    _A_in = _A_setup()

    def _B_setup():
        B, S, D, F = 1, 2048, 448, 1792
        return {
            "x": _w((lambda *s: torch.randn(*s, dtype=torch.bfloat16) * 0.05)(B, S, D)),
            "w_gate": _w((lambda *s: torch.randn(*s, dtype=torch.bfloat16) * 0.05)(D, F)),
            "w_up": _w((lambda *s: torch.randn(*s, dtype=torch.bfloat16) * 0.05)(D, F)),
            "w_down": _w((lambda *s: torch.randn(*s, dtype=torch.bfloat16) * 0.05)(F, D)),
        }
    _B_in = _B_setup()

    return {
        "A_x": _A_in["x"],
        "A_Lambda_re": _A_in["Lambda_re"],
        "A_Lambda_im": _A_in["Lambda_im"],
        "A_B_re": _A_in["B_re"],
        "A_B_im": _A_in["B_im"],
        "A_C_re": _A_in["C_re"],
        "A_C_im": _A_in["C_im"],
        "A_log_dt": _A_in["log_dt"],
        "A_Dskip": _A_in["Dskip"],
        "B_x": _B_in["x"],
        "B_w_gate": _B_in["w_gate"],
        "B_w_up": _B_in["w_up"],
        "B_w_down": _B_in["w_down"],
    }

def reference(A_x, A_Lambda_re, A_Lambda_im, A_B_re, A_B_im, A_C_re, A_C_im, A_log_dt, A_Dskip, B_x, B_w_gate, B_w_up, B_w_down):
    def _A_ref(x, Lambda_re, Lambda_im, B_re, B_im, C_re, C_im, log_dt, Dskip):
        Bsz, L, H = x.shape
        Lam = Lambda_re + 1j * Lambda_im
        Bmat = B_re + 1j * B_im
        Cmat = C_re + 1j * C_im
        dt = torch.exp(log_dt)
        Lam_bar = torch.exp(dt * Lam)
        B_bar = ((Lam_bar - 1.0) / Lam)[:, None] * Bmat
        Bu = torch.einsum("bld,pd->blp", x + 0j, B_bar)
        h = torch.zeros_like(Bu[:, 0, :])
        hs = []
        for t in range(L):
            h = Lam_bar[None, :] * h + Bu[:, t, :]
            hs.append(h)
        hseq = torch.stack(hs, 1)
        y = 2.0 * torch.einsum("blp,dp->bld", hseq, Cmat).real + x * Dskip[None, None, :]
        return y

    def _B_ref(x, w_gate, w_up, w_down):
        g = torch.einsum("bsd,df->bsf", x, w_gate)
        u = torch.einsum("bsd,df->bsf", x, w_up)
        h = _sigmoid(g) * u
        return torch.einsum("bsf,fd->bsd", h, w_down)

    x = A_x
    xn = _layernorm(x, axis=-1)
    s = _A_ref(xn, A_Lambda_re, A_Lambda_im, A_B_re, A_B_im, A_C_re, A_C_im, A_log_dt, A_Dskip)
    g = _silu(_B_ref(xn, B_w_gate, B_w_up, B_w_down))
    return x + s * g
```

```python
import re
TRANS = ("v_exp_f32","v_log_f32","v_rcp_f32","v_rsq_f32","v_sqrt_f32","v_sin_f32","v_cos_f32","v_rcp_iflag_f32")
def regs_of(tok):
    tok = tok.strip()
    neg = tok.lstrip("-|").rstrip("|")
    m = re.fullmatch(r"abs\((.*)\)", neg)
    if m: neg = m.group(1)
    m = re.fullmatch(r"([vsa])(\d+)", neg)
    if m: return {(m.group(1), int(m.group(2)))}
    m = re.fullmatch(r"([vsa])\[(\d+):(\d+)\]", neg)
    if m: return {(m.group(1), i) for i in range(int(m.group(2)), int(m.group(3))+1)}
    if neg in ("vcc","vcc_lo","vcc_hi"): return {("x","vcc")}
    if neg in ("exec","exec_lo","exec_hi"): return {("x","exec")}
    if neg == "m0": return {("x","m0")}
    return set()
def split_ops(s):
    out=[]; depth=0; cur=""
    for ch in s:
        if ch in "[(": depth+=1
        if ch in "])": depth-=1
        if ch=="," and depth==0: out.append(cur.strip()); cur=""
        else: cur+=ch
    if cur.strip(): out.append(cur.strip())
    return out
class Ins:
    __slots__=("text","mn","ops","kind","defs","uses","passes","srcC","srcAB","stdata","flags")
    def __init__(self, text):
        self.text=text
        t=text.strip()
        parts=t.split(None,1)
        self.mn=parts[0]
        rest=parts[1] if len(parts)>1 else ""
        ops=split_ops(rest)
        clean=[]
        mods=""
        for i,o in enumerate(ops):
            if i==len(ops)-1 or " " in o:
                sp=o.split(None,1)
                if sp:
                    clean.append(sp[0])
                    if len(sp)>1: mods+=" "+sp[1]
            else: clean.append(o)
        self.ops=clean; self.flags=mods
        mn=self.mn
        self.defs=set(); self.uses=set(); self.passes=0; self.srcC=set(); self.srcAB=set(); self.stdata=set()
        R=[regs_of(o) for o in clean]
        if mn.startswith("v_mfma"):
            self.kind="mfma"; self.defs=R[0]; self.srcAB=R[1]|R[2]; self.srcC=R[3] if len(R)>3 else set(); self.uses=self.srcAB|self.srcC
            self.passes = 8 if "32x32x16" in mn else (4 if "16x16x32" in mn else 16)
        elif mn.startswith("v_"):
            self.kind="valu"
            if mn.startswith("v_cmp"):
                self.defs=R[0]; self.uses=set().union(*R[1:]) if len(R)>1 else set()
                if mn.startswith("v_cmpx"): self.defs|={("x","exec")}
            elif mn.startswith("v_readfirstlane") or mn.startswith("v_readlane"):
                self.defs=R[0]; self.uses=set().union(*R[1:])
            elif "permlane" in mn and "swap" in mn:
                self.defs=R[0]|R[1]; self.uses=R[0]|R[1]
            elif mn.startswith(("v_add_co","v_sub_co","v_subrev_co","v_addc_co","v_subb_co")):
                self.defs=R[0]|R[1]; self.uses=set().union(*R[2:])
            else:
                self.defs=R[0]; self.uses=set().union(*R[1:]) if len(R)>1 else set()
                if mn.startswith(("v_fmac","v_dot2c","v_pk_fmac","v_writelane","v_mac")): self.uses|=R[0]
                if mn.startswith("v_cndmask") and len(clean)==3: self.uses|={("x","vcc")}
                if "dst_unused:UNUSED_PRESERVE" in mods: self.uses|=R[0]
        elif mn.startswith("ds_"):
            self.kind="ds"
            if mn.startswith(("ds_read","ds_bpermute","ds_permute","ds_swizzle")):
                self.defs=R[0]; self.uses=set().union(*R[1:]) if len(R)>1 else set()
            else:
                self.uses=set().union(*R)
        elif mn.startswith(("buffer_","global_","flat_")):
            self.kind="vmem"
            lds = (" lds" in (" "+mods+" ")) or "load_lds" in mn
            if "store" in mn:
                if mn.startswith("buffer_"): self.stdata=R[0]; self.uses=set().union(*R)
                else: self.stdata=R[1]; self.uses=set().union(*R)
            elif "atomic" in mn:
                self.uses=set().union(*R)
                if "sc0" in mods: self.defs=R[0]
            elif mn in ("buffer_inv","buffer_wbl2"): pass
            elif lds:
                self.uses=set().union(*R)|{("x","m0")}
            else:
                self.defs=R[0]; self.uses=set().union(*R[1:])
        elif mn.startswith("s_"):
            self.kind="salu"
            if mn.startswith(("s_cmp","s_cbranch","s_branch","s_waitcnt","s_barrier","s_nop","s_sleep","s_endpgm","s_setprio","s_bitcmp")):
                self.uses=set().union(*R) if R else set()
            else:
                self.defs=R[0] if R else set(); self.uses=set().union(*R[1:]) if len(R)>1 else set()
                if "saveexec" in mn: self.defs|={("x","exec")}
        else:
            self.kind="other"
    def ws(self):
        if self.mn=="s_nop": return int(self.ops[0],0)+1
        return 1
def isv(s): return {r for r in s if r[0] in "va"}
def iss(s): return {r for r in s if r[0]=="s" or r==("x","vcc")}
def need(prev, cur):
    n=0
    pk,ck=prev.kind,cur.kind
    if pk=="valu":
        dv=isv(prev.defs); dsg=iss(prev.defs)
        if ck=="mfma" and dv & cur.uses: n=max(n,2)
        if ck=="valu":
            if prev.mn in TRANS and cur.mn not in TRANS and dv & cur.uses: n=max(n,1)
            if prev.mn in TRANS and cur.mn in TRANS and dv & cur.uses: n=max(n,1)
            if "permlane" in cur.mn and dv & (cur.uses): n=max(n,2)
            if cur.mn.startswith(("v_readfirstlane","v_readlane")) and dv & cur.uses: n=max(n,1)
            if ("dpp" in cur.mn or "quad_perm" in cur.flags or "row_" in cur.flags) and dv & cur.uses: n=max(n,2)
            if dsg & cur.uses:
                n=max(n, 4 if cur.mn.startswith(("v_readlane","v_writelane")) else 2)
            if ("sdwa" in prev.mn or "op_sel" in prev.flags) and dv & (cur.uses|cur.defs): n=max(n,1)
            if ("x","exec") in prev.defs: n=max(n,4)
        if ck=="vmem" and dsg & cur.uses: n=max(n,5)
        if ck=="mfma" and ("x","exec") in prev.defs: n=max(n,4)
        if ck=="salu" and dsg & cur.uses: n=max(n,1)
    if pk=="mfma":
        P=prev.passes
        t={2:(2,4,5,1),4:(0,6,8,3),8:(0,10,12,7),16:(0,18,20,15)}[P]
        D=prev.defs
        if ck=="mfma":
            if D & cur.srcAB: n=max(n,t[2])
            if D & cur.srcC:
                if D==cur.srcC and cur.passes==P: n=max(n,t[0])
                else: n=max(n,t[1])
            elif D & cur.defs: n=max(n,t[1])
        elif ck in ("valu","ds","vmem"):
            if D & (cur.uses|cur.defs): n=max(n,t[2])
            if ck=="valu" and prev.srcC & cur.defs: n=max(n,t[3])
    if pk=="salu":
        if ("x","m0") in prev.defs and ck=="vmem" and ("x","m0") in cur.uses: n=max(n,1)
        if ("x","m0") in prev.defs and ck=="ds" and "addtid" in cur.mn: n=max(n,1)
    if pk=="vmem" and prev.stdata and len(prev.stdata)>=3:
        if prev.stdata & cur.defs: n=max(n,2 if ck=="valu" else 1)
    return n
class Asm:
    def __init__(self):
        self.lines=[]
    def e(self, s):
        for l in s.split("\n"):
            l=l.strip()
            if l: self.lines.append(l)
    def c(self, s): self.lines.append("; "+s)
    def label(self, n): self.lines.append(n+":")
    def finalize(self):
        out=[]; hist=[]
        pos=0; nnop=0
        for l in self.lines:
            if l.startswith(";") or l.startswith("."):
                out.append(l); continue
            if l.endswith(":"):
                out.append(l); continue
            code=l.split(";")[0].strip()
            ins=Ins(code)
            req=0
            for p,pp in hist:
                nd=need(p,ins)
                if nd:
                    have=pos-pp-p.ws()
                    req=max(req,nd-have)
            while req>0:
                k=min(req,16)
                out.append(f"    s_nop {k-1}"); pos+=k; req-=k; nnop+=1
            out.append("    "+l)
            hist.append((ins,pos)); pos+=ins.ws()
            hist=[(p,pp) for p,pp in hist if pos-pp<=24]
        self.nnop=nnop
        return "\n".join(out)
```

```python
from gen import *
import math
LOG2E = 1.4426950408889634
RA, RB_, RC, RD, RE_ = 0, 32768, 65536, 98304, 131072
XR = [RA, RA+16384, RB_, RB_+16384, RC, RC+16384, RD]
SR = [RD+16384, RD+24576, RE_, RE_+8192, RE_+16384, RE_+24576, RD+16384]
GR = [RA, RB_, RC, RE_, RD, RA, RB_]
SBASE = RD+16384
vXe, vXo, vS, vGg, vGu = 4,5,6,7,8
vXA, vSA, vGA = 240, 244, 248
WF = 16
SACC = 48
GACC = 64
XF = 128

def ids(g):
    e=g.e
    e(f"s_and_b32 s{sT0}, s2, 7"); e(f"s_sub_u32 s{sT1}, s2, 32"); e(f"s_lshr_b32 s{sT1}, s{sT1}, 3")
    e(f"s_and_b32 s{sT2}, s{sT1}, 3"); e(f"s_lshr_b32 s{sCB7}, s{sT1}, 2")
    e(f"s_lshr_b32 s{sT3}, s{sT0}, 1"); e(f"s_lshl_b32 s{sT3}, s{sT3}, 2"); e(f"s_add_u32 s{sRB}, s{sT3}, s{sT2}")
    e(f"s_and_b32 s{sT3}, s{sT0}, 1"); e(f"s_mul_i32 s{sT3}, s{sT3}, 7"); e(f"s_add_u32 s{sCB}, s{sT3}, s{sCB7}")
    e(f"s_lshl_b32 s{sT3}, s{sT0}, 2"); e(f"s_add_u32 s{sRB64}, s{sT3}, s{sT2}")

def dma_x(g, j):
    e=g.e
    for par,v in ((0,vXe),(1,vXo)):
        e(f"s_lshl_b32 s{sT0}, s{sW}, 11"); e(f"s_add_u32 m0, s{sT0}, {XR[j]+par*1024}")
        e(f"s_add_u32 s{sT1}, s{sXB}, {128*j}")
        e(f"buffer_load_dwordx4 v{v}, {srd(R_X)}, s{sT1} offen lds")
def dma_s(g, j):
    e=g.e
    e(f"s_lshl_b32 s{sT0}, s{sW}, 10"); e(f"s_add_u32 m0, s{sT0}, {SR[j]}")
    e(f"s_add_u32 s{sT1}, s{sSB}, {128*j}")
    e(f"buffer_load_dwordx4 v{vS}, {srd(R_B)}, s{sT1} offen lds")
def dma_g(g, j):
    e=g.e
    for cgp in range(2):
        for ty,(v,r) in enumerate(((vGg,R_WG),(vGu,R_WU))):
            e(f"s_lshl_b32 s{sT0}, s{sW}, 11"); e(f"s_add_u32 m0, s{sT0}, {GR[j]+cgp*16384+ty*1024}")
            e(f"s_add_u32 s{sT1}, s{sGB}, {64*3584*j+128*cgp}")
            e(f"buffer_load_dwordx4 v{v}, {srd(r)}, s{sT1} offen lds")

def setup_p1(g):
    e=g.e
    g.mk_srd(R_X, P_X, 2048*896); g.mk_srd(R_WG, P_WG, 448*3584); g.mk_srd(R_WU, P_WU, 448*3584)
    e(f"s_lshr_b32 s{sT0}, s{sW}, 1"); e(f"s_and_b32 s{sT0}, s{sT0}, 1"); e(f"s_cmp_eq_u32 s{sT0}, 0")
    e(f"s_cselect_b32 s{R_B}, s{P_BRE}, s{P_BIM}"); e(f"s_cselect_b32 s{R_B+1}, s{P_BRE+1}, s{P_BIM+1}")
    e(f"s_mov_b32 s{R_B+2}, {448*896}"); e(f"s_mov_b32 s{R_B+3}, 0x00020000")
    e(f"s_lshl_b32 s{sT0}, s{sRB}, 7"); e(f"s_lshl_b32 s{sT1}, s{sW}, 4"); e(f"s_add_u32 s{sT0}, s{sT0}, s{sT1}"); e(f"s_mul_i32 s{sXB}, s{sT0}, 896")
    e(f"s_lshl_b32 s{sT0}, s{sCB}, 5"); e(f"s_lshl_b32 s{sT1}, s{sCG}, 4"); e(f"s_add_u32 s{sT0}, s{sT0}, s{sT1}")
    e(f"s_and_b32 s{sT1}, s{sW}, 1"); e(f"s_lshl_b32 s{sT1}, s{sT1}, 3"); e(f"s_add_u32 s{sT0}, s{sT0}, s{sT1}"); e(f"s_mul_i32 s{sSB}, s{sT0}, 896")
    e(f"s_mul_i32 s{sT0}, s{sW}, {8*3584}"); e(f"s_lshl_b32 s{sT1}, s{sCB}, 8"); e(f"s_add_u32 s{sGB}, s{sT0}, s{sT1}")
    e("v_lshrrev_b32 v9, 3, v0"); e("v_and_b32 v10, 7, v0"); e("v_lshrrev_b32 v11, 4, v0")
    e("v_mul_u32_u24 v12, 896, v9")
    e("v_xor_b32 v13, v10, v11"); e("v_lshlrev_b32 v13, 4, v13"); e(f"v_add_u32 v{vXe}, v12, v13")
    e("v_or_b32 v13, 4, v11"); e("v_xor_b32 v13, v10, v13"); e("v_lshlrev_b32 v13, 4, v13"); e(f"v_add_u32 v{vXo}, v12, v13"); e(f"v_add_u32 v{vXo}, {8*896}, v{vXo}")
    e(f"s_and_b32 s{sT0}, s{sW}, 1"); e(f"s_lshl_b32 s{sT0}, s{sT0}, 2")
    e(f"v_or_b32 v13, s{sT0}, v11"); e("v_xor_b32 v13, v10, v13"); e("v_lshlrev_b32 v13, 4, v13"); e(f"v_add_u32 v{vS}, v12, v13")
    e("v_mul_u32_u24 v12, 3584, v9"); e("v_and_b32 v13, 1, v10"); e("v_lshlrev_b32 v13, 4, v13"); e("v_add_u32 v12, v12, v13")
    e("v_lshrrev_b32 v13, 1, v10"); e("v_and_b32 v14, 1, v11")
    e("v_xor_b32 v15, v13, v14"); e("v_lshlrev_b32 v15, 5, v15"); e(f"v_add_u32 v{vGg}, v12, v15")
    e("v_or_b32 v14, 2, v14"); e("v_xor_b32 v15, v13, v14"); e("v_lshlrev_b32 v15, 5, v15"); e(f"v_add_u32 v{vGu}, v12, v15")
def issue_first(g):
    for j in range(6):
        dma_x(g,j); dma_s(g,j)
    dma_x(g,6)
def setup_frag_addr(g):
    e=g.e
    e("v_and_b32 v9, 31, v0"); e("v_lshrrev_b32 v10, 5, v0")
    tau(g, 11, 9, 12)
    e(f"s_lshl_b32 s{sT0}, s{sR}, 5"); e(f"v_add_u32 v12, s{sT0}, v11"); e("v_lshlrev_b32 v12, 7, v12")
    e("v_lshrrev_b32 v13, 1, v11"); e("v_and_b32 v13, 7, v13")
    for s in range(4):
        e(f"v_or_b32 v14, {2*s}, v10"); e("v_xor_b32 v14, v14, v13"); e("v_lshlrev_b32 v14, 4, v14"); e(f"v_add_u32 v{vXA+s}, v12, v14")
    e(f"s_lshl_b32 s{sT0}, s{sCG}, 5"); e(f"v_add_u32 v12, s{sT0}, v9"); e("v_lshlrev_b32 v12, 7, v12"); e(f"v_add_u32 v12, {SBASE}, v12")
    e("v_lshrrev_b32 v13, 1, v9"); e("v_and_b32 v13, 7, v13")
    for s in range(4):
        e(f"v_or_b32 v14, {2*s}, v10"); e("v_xor_b32 v14, v14, v13"); e("v_lshlrev_b32 v14, 4, v14"); e(f"v_add_u32 v{vSA+s}, v12, v14")
    e("v_lshrrev_b32 v9, 4, v0"); e("v_and_b32 v10, 1, v9"); e("v_lshrrev_b32 v11, 1, v9")
    e("v_lshrrev_b32 v12, 2, v0"); e("v_and_b32 v12, 3, v12"); e("v_and_b32 v13, 3, v0")
    e("v_lshlrev_b32 v14, 11, v11"); e("v_lshlrev_b32 v15, 10, v10"); e("v_add_u32 v14, v14, v15")
    e("v_lshlrev_b32 v15, 7, v12"); e("v_add_u32 v14, v14, v15"); e("v_lshlrev_b32 v15, 3, v13"); e("v_add_u32 v14, v14, v15")
    e(f"s_lshl_b32 s{sT0}, s{sCG}, 14"); e(f"v_add_u32 v14, s{sT0}, v14")
    e("v_lshrrev_b32 v12, 1, v12"); e("v_lshlrev_b32 v10, 1, v10"); e("v_or_b32 v12, v12, v10")
    for t in range(4):
        e(f"v_xor_b32 v15, {t}, v12"); e("v_lshlrev_b32 v15, 5, v15"); e(f"v_add_u32 v{vGA+t}, v14, v15")
def tau(g, d, s, t):
    e=g.e
    e(f"v_lshrrev_b32 v{t}, 2, v{s}"); e(f"v_and_b32 v{t}, 1, v{t}"); e(f"v_lshlrev_b32 v{d}, 4, v{t}")
    e(f"v_lshrrev_b32 v{t}, 3, v{s}"); e(f"v_lshlrev_b32 v{t}, 2, v{t}"); e(f"v_add_u32 v{d}, v{d}, v{t}")
    e(f"v_and_b32 v{t}, 3, v{s}"); e(f"v_add_u32 v{d}, v{d}, v{t}")

def s_chunk(g, j):
    e=g.e
    xoff = XR[j] - (65536 if j>=4 else 0)
    for s in range(4):
        ks = 4*j+s
        e(f"ds_read_b128 {vr(XF+4*ks,4)}, v{vXA+s} offset:{xoff}")
        e(f"ds_read_b128 {vr(WF+4*s+16*(j&1),4)}, v{vSA+s} offset:{SR[j]-SBASE}")
    for s in range(4):
        ks = 4*j+s
        e(f"s_waitcnt lgkmcnt({6-2*s})")
        c = "0" if ks==0 else vr(SACC,16)
        e(f"v_mfma_f32_32x32x16_bf16 {vr(SACC,16)}, {vr(XF+4*ks,4)}, {vr(WF+4*s+16*(j&1),4)}, {c}")
    if j==3:
        for s in range(4): e(f"v_add_u32 v{vXA+s}, 0x10000, v{vXA+s}")

class GState: base=0
def g_reads(g, j, s, buf):
    e=g.e
    off = GR[j]-GState.base + s*4096
    for t in range(4):
        d = WF+16*buf+4*t
        e(f"ds_read_b64_tr_b16 {vr(d,2)}, v{vGA+t} offset:{off}")
        e(f"ds_read_b64_tr_b16 {vr(d+2,2)}, v{vGA+t} offset:{off+512}")
def g_rebase(g, j):
    want = GR[j] & ~0xFFFF if GR[j] >= 65536 else 0
    if GR[j] >= 65536: want = GR[j]
    if want != GState.base:
        d = want - GState.base
        for t in range(4):
            if d>0: g.e(f"v_add_u32 v{vGA+t}, {d}, v{vGA+t}")
            else: g.e(f"v_subrev_u32 v{vGA+t}, {-d}, v{vGA+t}")
        GState.base = want
def g_segment(g, chunks):
    e=g.e
    steps=[(j,s) for j in chunks for s in range(4)]
    g_rebase(g, steps[0][0])
    g_reads(g, steps[0][0], steps[0][1], 0)
    for n,(j,s) in enumerate(steps):
        ks=4*j+s; buf=n&1
        nxt = steps[n+1] if n+1<len(steps) else None
        if nxt and nxt[0]!=j: pass
        for t in range(4):
            if nxt is not None:
                e(f"s_waitcnt lgkmcnt(6)")
            else:
                e(f"s_waitcnt lgkmcnt({6-2*t})")
            c = "0" if ks==0 else vr(GACC+16*t,16)
            e(f"v_mfma_f32_32x32x16_bf16 {vr(GACC+16*t,16)}, {vr(WF+16*buf+4*t,4)}, {vr(XF+4*ks,4)}, {c}")
            if nxt is not None:
                if t==0: g_rebase_tile = None
                nj,ns = nxt
                if nj!=j and t==0: g_rebase(g, nj)
                off = GR[nj]-GState.base + ns*4096
                d = WF+16*(buf^1)+4*t
                e(f"ds_read_b64_tr_b16 {vr(d,2)}, v{vGA+t} offset:{off}")
                e(f"ds_read_b64_tr_b16 {vr(d+2,2)}, v{vGA+t} offset:{off+512}")

def bar(g, vm=None):
    e=g.e
    if vm is not None: e(f"s_waitcnt vmcnt({vm})")
    e("s_waitcnt lgkmcnt(0)")
    e("s_barrier")

def poll(g, vaddr, soff, nregs_tag=True, name="poll", dst=12):
    e=g.e; L=g.lab("L_"+name); Ld=g.lab("L_"+name+"d")
    e(f"s_mov_b32 s{sCNT}, 0"); e(f"s_mov_b32 s{sT5}, {soff}")
    g.a.label(L)
    e(f"buffer_load_dwordx2 {vr(dst,2)}, v{vaddr}, {srd(R_WS)}, s{sT5} offen sc1")
    e("s_waitcnt vmcnt(0)")
    e(f"v_xor_b32 v{dst}, s{sTL}, v{dst}"); e(f"v_xor_b32 v{dst+1}, s{sTH}, v{dst+1}"); e(f"v_or_b32 v{dst}, v{dst}, v{dst+1}")
    e(f"v_cmp_ne_u32 vcc, 0, v{dst}")
    e(f"s_cbranch_vccz {Ld}")
    e("s_sleep 2")
    e(f"s_add_u32 s{sCNT}, s{sCNT}, 1"); e(f"s_cmp_lt_u32 s{sCNT}, 50000"); e(f"s_cbranch_scc1 {L}")
    g.a.label(Ld)

def cmul_acc(g, dr, di, ar, ai, xr, xi, ur, ui, t):
    e=g.e
    e(f"v_fma_f32 v{t}, v{ar}, v{xr}, v{ur}"); e(f"v_fma_f32 v{t+1}, v{ar}, v{xi}, v{ui}")
    e(f"v_fma_f32 v{t}, -v{ai}, v{xi}, v{t}"); e(f"v_fma_f32 v{di}, v{ai}, v{xr}, v{t+1}"); e(f"v_mov_b32 v{dr}, v{t}")
def csq(g, dr, di, xr, xi, t):
    e=g.e
    e(f"v_mul_f32 v{t}, v{xi}, v{xi}"); e(f"v_mul_f32 v{di}, v{xr}, v{xi}"); e(f"v_fma_f32 v{dr}, v{xr}, v{xr}, -v{t}"); e(f"v_add_f32 v{di}, v{di}, v{di}")

vNM, vRR, vSS = 4,5,6
vRSr, vRSi = 8, 9
vST2 = 128
vLA, vLB = 144,145
vL8, vL16, vL32, vL128 = 146,148,150,152
vC2 = 154
vPQ = 156
vTMP = 160
def post_loads(g):
    e=g.e
    e("v_and_b32 v9, 31, v0"); tau(g, 10, 9, 11)
    e(f"s_lshl_b32 s{sT0}, s{sRB}, 7"); e(f"s_lshl_b32 s{sT1}, s{sR}, 5"); e(f"s_add_u32 s{sT0}, s{sT0}, s{sT1}")
    e(f"v_add_u32 v10, s{sT0}, v10"); e("v_lshlrev_b32 v10, 4, v10"); e(f"s_mov_b32 s{sT1}, {WS_STATS}")
    e(f"buffer_load_dwordx4 v[4:7], v10, {srd(R_WS)}, s{sT1} offen sc1")
    e("v_lshrrev_b32 v10, 4, v0"); e("v_lshlrev_b32 v10, 6, v10"); e(f"s_lshl_b32 s{sT1}, s{sT0}, 3"); e(f"s_add_u32 s{sT1}, s{sT1}, {WS_STAT2}")
    for i in range(4): e(f"buffer_load_dwordx4 {vr(vST2+4*i,4)}, v10, {srd(R_WS)}, s{sT1} offen offset:{16*i} sc1")
    e(f"s_lshl_b32 s{sT0}, s{sCB}, 5"); e(f"s_lshl_b32 s{sT1}, s{sCG}, 4"); e(f"s_add_u32 s{sT0}, s{sT0}, s{sT1}")
    e("v_and_b32 v10, 15, v0"); e(f"v_add_u32 v10, s{sT0}, v10"); e("v_lshlrev_b32 v11, 2, v10"); e("v_lshlrev_b32 v10, 1, v10")
    e(f"s_mov_b32 s{sT1}, {WS_RS}")
    e(f"buffer_load_dword v{vRSr}, v11, {srd(R_WS)}, s{sT1} offen sc1"); e(f"buffer_load_dword v{vRSi}, v11, {srd(R_WS)}, s{sT1} offen offset:2048 sc1")
    e(f"global_load_ushort v{vTMP}, v10, {sp(P_LRE)}"); e(f"global_load_ushort v{vTMP+1}, v10, {sp(P_LIM)}"); e(f"global_load_ushort v{vTMP+2}, v10, {sp(P_LDT)}")
def scan_params(g):
    e=g.e; T=vTMP
    for i in range(3): e(f"v_lshlrev_b32 v{T+i}, 16, v{T+i}")
    e(f"v_mul_f32 v{T+2}, {hex(f32(LOG2E))}, v{T+2}"); e(f"v_exp_f32 v{T+2}, v{T+2}"); g.rbf(T+2, T+2)
    e(f"v_mul_f32 v{T+3}, v{T+2}, v{T}"); e(f"v_mul_f32 v{T+4}, v{T+2}, v{T+1}")
    e(f"v_mul_f32 v{T+3}, {hex(f32(LOG2E))}, v{T+3}"); e(f"v_exp_f32 v{T+3}, v{T+3}")
    e(f"v_mul_f32 v{T+4}, {hex(f32(1/(2*math.pi)))}, v{T+4}")
    e(f"v_cos_f32 v{T+5}, v{T+4}"); e(f"v_sin_f32 v{T+6}, v{T+4}")
    e(f"v_mul_f32 v{vLA}, v{T+3}, v{T+5}"); e(f"v_mul_f32 v{vLB}, v{T+3}, v{T+6}")
    e(f"v_add_f32 v{T+7}, -1.0, v{vLA}")
    e(f"v_mul_f32 v{T+8}, v{T}, v{T}"); e(f"v_fmac_f32 v{T+8}, v{T+1}, v{T+1}"); e(f"v_rcp_f32 v{T+8}, v{T+8}")
    e(f"v_mul_f32 v{T+9}, v{T+7}, v{T}"); e(f"v_fmac_f32 v{T+9}, v{vLB}, v{T+1}")
    e(f"v_mul_f32 v{T+10}, v{vLB}, v{T}"); e(f"v_fma_f32 v{T+10}, -v{T+7}, v{T+1}, v{T+10}")
    e(f"v_add_f32 v{T+8}, v{T+8}, v{T+8}")
    e(f"v_mul_f32 v{vC2}, v{T+9}, v{T+8}"); e(f"v_mul_f32 v{vC2+1}, v{T+10}, v{T+8}")
    csq(g, T+12, T+13, vLA, vLB, T+11); csq(g, T+14, T+15, T+12, T+13, T+11); csq(g, vL8, vL8+1, T+14, T+15, T+11)
    csq(g, vL16, vL16+1, vL8, vL8+1, T+11); csq(g, vL32, vL32+1, vL16, vL16+1, T+11)
    csq(g, T+12, T+13, vL32, vL32+1, T+11); csq(g, vL128, vL128+1, T+12, T+13, T+11)
LX_W = 0
LX_T = 8192
def s_pass1(g):
    e=g.e; T=vTMP; U=SACC
    for i in range(8): e(f"v_permlane16_swap_b32 v{U+i}, v{U+8+i}")
    for i in range(8):
        e(f"v_fma_f32 v{U+i}, v{vST2+2*i}, v{vRSr}, v{U+i}"); e(f"v_fma_f32 v{U+8+i}, v{vST2+2*i}, v{vRSi}, v{U+8+i}")
    for i in range(8):
        e(f"v_mul_f32 v{U+i}, v{vST2+2*i+1}, v{U+i}"); e(f"v_mul_f32 v{U+8+i}, v{vST2+2*i+1}, v{U+8+i}")
    E=T
    e(f"v_mov_b32 v{E}, v{U}"); e(f"v_mov_b32 v{E+1}, v{U+8}")
    for i in range(1,8): cmul_acc(g, E, E+1, vLA, vLB, E, E+1, U+i, U+8+i, T+2)
    X=T+4; Y=T+6
    e(f"v_mov_b32 v{X}, v{E}"); e(f"v_mov_b32 v{X+1}, v{E+1}"); e(f"v_mov_b32 v{Y}, v{E}"); e(f"v_mov_b32 v{Y+1}, v{E+1}")
    e(f"v_permlane16_swap_b32 v{X}, v{Y}"); e(f"v_permlane16_swap_b32 v{X+1}, v{Y+1}")
    P=T+8
    cmul_acc(g, P, P+1, vL8, vL8+1, X, X+1, Y, Y+1, T+2)
    X2=T+10; Y2=T+12
    e(f"v_mov_b32 v{X2}, v{P}"); e(f"v_mov_b32 v{X2+1}, v{P+1}"); e(f"v_mov_b32 v{Y2}, v{P}"); e(f"v_mov_b32 v{Y2+1}, v{P+1}")
    e(f"v_permlane32_swap_b32 v{X2}, v{Y2}"); e(f"v_permlane32_swap_b32 v{X2+1}, v{Y2+1}")
    W=T+14
    cmul_acc(g, W, W+1, vL16, vL16+1, X2, X2+1, Y2, Y2+1, T+2)
    Z=T+16
    cmul_acc(g, Z, Z+1, vL8, vL8+1, X2, X2+1, X, X+1, T+2)
    e("v_lshrrev_b32 v10, 4, v0")
    for k in range(2):
        e("v_cmp_eq_u32 vcc, 1, v10"); e(f"v_cndmask_b32 v{vPQ+k}, 0, v{X+k}, vcc")
        e("v_cmp_eq_u32 vcc, 2, v10"); e(f"v_cndmask_b32 v{vPQ+k}, v{vPQ+k}, v{X2+k}, vcc")
        e("v_cmp_eq_u32 vcc, 3, v10"); e(f"v_cndmask_b32 v{vPQ+k}, v{vPQ+k}, v{Z+k}, vcc")
    e(f"s_lshl_b32 s{sT0}, s{sW}, 7"); e("v_and_b32 v10, 15, v0"); e("v_lshlrev_b32 v10, 3, v10"); e(f"v_add_u32 v10, s{sT0}, v10")
    e(f"ds_write_b64 v10, {vr(W,2)} offset:{LX_W}")
def s_publish(g):
    e=g.e; T=vTMP
    e(f"s_lshl_b32 s{sT0}, s{sCG}, 9"); e("v_and_b32 v10, 15, v0"); e("v_lshlrev_b32 v10, 3, v10"); e(f"v_add_u32 v10, s{sT0}, v10")
    WW=200
    for k in range(4): e(f"ds_read_b64 {vr(WW+2*k,2)}, v10 offset:{LX_W+128*k}")
    e("s_waitcnt lgkmcnt(0)")
    Ls=g.lab("L_nopub")
    e(f"s_cmp_lg_u32 s{sR}, 0"); e(f"s_cbranch_scc1 {Ls}")
    E=T
    cmul_acc(g, E, E+1, vL32, vL32+1, WW, WW+1, WW+2, WW+3, T+4)
    cmul_acc(g, E, E+1, vL32, vL32+1, E, E+1, WW+4, WW+5, T+4)
    cmul_acc(g, E, E+1, vL32, vL32+1, E, E+1, WW+6, WW+7, T+4)
    e(f"v_mov_b32 v{E+2}, s{sTL}"); e(f"v_mov_b32 v{E+3}, s{sTH}")
    e(f"s_lshl_b32 s{sT0}, s{sCB}, 1"); e(f"s_add_u32 s{sT0}, s{sT0}, s{sCG}"); e(f"s_lshl_b32 s{sT0}, s{sT0}, 4"); e(f"s_add_u32 s{sT0}, s{sT0}, s{sRB}")
    e(f"s_lshl_b32 s{sT0}, s{sT0}, 8"); e(f"s_add_u32 s{sT0}, s{sT0}, {WS_EG}")
    e("v_and_b32 v10, 15, v0"); e("v_lshlrev_b32 v10, 4, v10")
    e("s_mov_b64 s[96:97], exec"); e("s_mov_b64 exec, 0xffff")
    e(f"buffer_store_dwordx4 {vr(E,4)}, v10, {srd(R_WS)}, s{sT0} offen sc1")
    e("s_mov_b64 exec, s[96:97]")
    g.a.label(Ls)
def a2_base(g, dst_s):
    e=g.e
    e(f"s_lshl_b32 s{dst_s}, s{sRB}, 2"); e(f"s_add_u32 s{dst_s}, s{dst_s}, s{sR}"); e(f"s_mul_i32 s{dst_s}, s{dst_s}, {168*1024}"); e(f"s_add_u32 s{dst_s}, s{dst_s}, {WS_A2}")
def g_epilogue(g):
    e=g.e
    CS=208
    H=vTMP
    e(f"v_mul_f32 v7, {hex(f32(-LOG2E))}, v{vRR}")
    e("v_lshrrev_b32 v10, 5, v0"); e("v_lshlrev_b32 v10, 4, v10")
    e("v_lshlrev_b32 v11, 4, v0")
    a2_base(g, sT3)
    e(f"s_lshl_b32 s{sT0}, s{sCB}, 3"); e(f"s_lshl_b32 s{sT1}, s{sCG}, 2"); e(f"s_add_u32 s{sT0}, s{sT0}, s{sT1}")
    e(f"s_lshl_b32 s{sT1}, s{sT0}, 10"); e(f"s_add_u32 s{sT3}, s{sT3}, s{sT1}")
    e(f"s_lshl_b32 s{sT1}, s{sT0}, 6"); e(f"s_add_u32 s{sT1}, s{sT1}, {WS_CSG}"); e(f"s_add_u32 s{sT2}, s{sT1}, {WS_CSU-WS_CSG}")
    def ld(t):
        b = CS+16*(t&1)
        e(f"buffer_load_dwordx4 {vr(b,4)}, v10, {srd(R_WS)}, s{sT1} offen offset:{64*t} sc1")
        e(f"buffer_load_dwordx4 {vr(b+4,4)}, v10, {srd(R_WS)}, s{sT1} offen offset:{64*t+32} sc1")
        e(f"buffer_load_dwordx4 {vr(b+8,4)}, v10, {srd(R_WS)}, s{sT2} offen offset:{64*t} sc1")
        e(f"buffer_load_dwordx4 {vr(b+12,4)}, v10, {srd(R_WS)}, s{sT2} offen offset:{64*t+32} sc1")
    ld(0); ld(1)
    for t in range(4):
        b = CS+16*(t&1); A=GACC+16*t
        e(f"s_waitcnt vmcnt({[4,5,5,1][t]})")
        for i in range(8): e(f"v_fma_f32 v{A+i}, v{vNM}, v{b+i}, v{A+i}")
        for i in range(8): e(f"v_fma_f32 v{A+8+i}, v{vNM}, v{b+8+i}, v{A+8+i}")
        if t+2<4: ld(t+2)
        for i in range(8): e(f"v_mul_f32 v{A+i}, v7, v{A+i}")
        for i in range(8): e(f"v_exp_f32 v{A+i}, v{A+i}")
        for i in range(8): e(f"v_fma_f32 v{A+i}, v{A+i}, v{vSS}, v{vSS}")
        for i in range(8): e(f"v_rcp_f32 v{A+i}, v{A+i}")
        for i in range(8): e(f"v_mul_f32 v{A+i}, v{A+8+i}, v{A+i}")
        for i in range(4): e(f"v_cvt_pk_bf16_f32 v{H+4*(t&1)+i}, v{A+2*i}, v{A+2*i+1}")
        e(f"buffer_store_dwordx4 {vr(H+4*(t&1),4)}, v11, {srd(R_WS)}, s{sT3} offen offset:{1024*t} sc1")
def carry_and_pass2(g):
    e=g.e; a=g.a; T=vTMP+8; U=SACC; WW=200
    HI=T
    e(f"v_mov_b32 v{HI}, 0"); e(f"v_mov_b32 v{HI+1}, 0")
    Lz=g.lab("L_nocarry")
    e(f"s_cmp_eq_u32 s{sRB}, 0"); e(f"s_cbranch_scc1 {Lz}")
    GR0=64
    e(f"s_lshl_b32 s{sT0}, s{sCB}, 1"); e(f"s_add_u32 s{sT0}, s{sT0}, s{sCG}"); e(f"s_lshl_b32 s{sT0}, s{sT0}, 12"); e(f"s_add_u32 s{sT0}, s{sT0}, {WS_EG}")
    e("v_and_b32 v10, 15, v0"); e("v_lshlrev_b32 v10, 4, v10")
    e(f"s_mov_b32 s{sCNT}, 0")
    Lp=g.lab("L_gpoll"); Lc=g.lab("L_gchk");
    a.label(Lp)
    for k in range(15):
        e(f"buffer_load_dwordx4 {vr(GR0+4*k,4)}, v10, {srd(R_WS)}, s{sT0} offen offset:{256*k} sc1")
    e("s_waitcnt vmcnt(0)")
    e("v_mov_b32 v11, 0")
    for k in range(15):
        e(f"s_cmp_le_u32 s{sRB}, {k}"); e(f"s_cbranch_scc1 {Lc}")
        e(f"v_xor_b32 v12, s{sTL}, v{GR0+4*k+2}"); e(f"v_xor_b32 v13, s{sTH}, v{GR0+4*k+3}"); e("v_or3_b32 v11, v11, v12, v13")
    a.label(Lc)
    e("s_nop 1")
    e("v_cmp_ne_u32 vcc, 0, v11")
    Lok=g.lab("L_gok")
    e(f"s_cbranch_vccz {Lok}")
    e("s_sleep 2")
    e(f"s_add_u32 s{sCNT}, s{sCNT}, 1"); e(f"s_cmp_lt_u32 s{sCNT}, 50000"); e(f"s_cbranch_scc1 {Lp}")
    a.label(Lok)
    for k in range(15):
        e(f"s_cmp_le_u32 s{sRB}, {k}"); e(f"s_cbranch_scc1 {Lz}")
        cmul_acc(g, HI, HI+1, vL128, vL128+1, HI, HI+1, GR0+4*k, GR0+4*k+1, T+2)
    a.label(Lz)
    e("s_nop 1")
    Lt=g.lab("L_tr")
    for k in range(3):
        e(f"s_cmp_le_u32 s{sR}, {k}"); e(f"s_cbranch_scc1 {Lt}")
        cmul_acc(g, HI, HI+1, vL32, vL32+1, HI, HI+1, WW+2*k, WW+2*k+1, T+2)
    a.label(Lt)
    e("s_nop 1")
    Q=T+4; Z=T+6
    e(f"v_mov_b32 v{T+8}, 0"); e(f"v_mov_b32 v{T+9}, 0")
    cmul_acc(g, Z, Z+1, vL8, vL8+1, vL16, vL16+1, T+8, T+9, T+2)
    e("v_lshrrev_b32 v10, 4, v0")
    e(f"v_mov_b32 v{Q}, 1.0"); e(f"v_mov_b32 v{Q+1}, 0")
    for qq,src in ((1,vL8),(2,vL16),(3,Z)):
        e(f"v_cmp_eq_u32 vcc, {qq}, v10"); e(f"v_cndmask_b32 v{Q}, v{Q}, v{src}, vcc"); e(f"v_cndmask_b32 v{Q+1}, v{Q+1}, v{src+1}, vcc")
    cmul_acc(g, HI, HI+1, Q, Q+1, HI, HI+1, vPQ, vPQ+1, T+2)
    OR=64; OI=72
    for i in range(8):
        cmul_acc(g, HI, HI+1, vLA, vLB, HI, HI+1, U+i, U+8+i, T+2)
        e(f"v_mul_f32 v{OR+i}, v{vC2}, v{HI}"); e(f"v_fma_f32 v{OR+i}, -v{vC2+1}, v{HI+1}, v{OR+i}")
        e(f"v_mul_f32 v{OI+i}, -v{vC2}, v{HI+1}"); e(f"v_fma_f32 v{OI+i}, -v{vC2+1}, v{HI}, v{OI+i}")
    PK=80
    for i in range(4): e(f"v_cvt_pk_bf16_f32 v{PK+i}, v{OR+2*i}, v{OR+2*i+1}");
    for i in range(4): e(f"v_cvt_pk_bf16_f32 v{PK+4+i}, v{OI+2*i}, v{OI+2*i+1}")
    e(f"s_lshl_b32 s{sT0}, s{sW}, 11"); e(f"s_add_u32 s{sT0}, s{sT0}, {LX_T}")
    e("v_and_b32 v10, 15, v0"); e("v_lshlrev_b32 v10, 6, v10"); e("v_lshrrev_b32 v11, 4, v0"); e("v_lshlrev_b32 v11, 4, v11"); e("v_add_u32 v10, v10, v11"); e(f"v_add_u32 v10, s{sT0}, v10")
    e(f"ds_write_b128 v10, {vr(PK,4)}"); e(f"ds_write_b128 v10, {vr(PK+4,4)} offset:1024")
    e("v_lshrrev_b32 v11, 4, v0"); e("v_and_b32 v12, 1, v11"); e("v_lshrrev_b32 v11, 1, v11")
    e("v_lshlrev_b32 v11, 10, v11"); e("v_lshlrev_b32 v12, 4, v12"); e("v_add_u32 v11, v11, v12")
    e("v_lshrrev_b32 v12, 2, v0"); e("v_and_b32 v12, 3, v12"); e("v_lshlrev_b32 v12, 6, v12"); e("v_add_u32 v11, v11, v12")
    e("v_and_b32 v12, 1, v0"); e("v_lshlrev_b32 v12, 5, v12"); e("v_add_u32 v11, v11, v12")
    e("v_lshrrev_b32 v12, 1, v0"); e("v_and_b32 v12, 1, v12"); e("v_lshlrev_b32 v12, 3, v12"); e("v_add_u32 v11, v11, v12")
    e(f"v_add_u32 v11, s{sT0}, v11")
    e("s_waitcnt lgkmcnt(0)")
    FR=96
    for hp in range(2):
        for ee in range(2):
            e(f"ds_read_b64_tr_b16 {vr(FR+4*hp+2*ee,2)}, v11 offset:{(8*hp+4*ee)*64}")
    a2_base(g, sT3)
    e(f"s_lshl_b32 s{sT0}, s{sCB}, 1"); e(f"s_add_u32 s{sT0}, s{sT0}, s{sCG}"); e(f"s_lshl_b32 s{sT0}, s{sT0}, 11"); e(f"s_add_u32 s{sT0}, s{sT0}, {112*1024}")
    e(f"s_add_u32 s{sT3}, s{sT3}, s{sT0}")
    e("v_lshlrev_b32 v10, 4, v0")
    e("s_waitcnt lgkmcnt(0)")
    for hp in range(2):
        e(f"buffer_store_dwordx4 {vr(FR+4*hp,4)}, v10, {srd(R_WS)}, s{sT3} offen offset:{1024*hp} sc1")
def publish_flag2(g):
    e=g.e
    e("s_waitcnt vmcnt(0)"); e("s_barrier")
    L=g.lab("L_nf2")
    e(f"s_cmp_lg_u32 s{sW}, 0"); e(f"s_cbranch_scc1 {L}")
    e(f"v_mov_b32 v8, s{sTL}"); e(f"v_mov_b32 v9, s{sTH}"); e("v_mov_b32 v10, 0")
    e(f"s_lshl_b32 s{sT0}, s{sRB}, 7"); e(f"s_lshl_b32 s{sT1}, s{sCB}, 3"); e(f"s_add_u32 s{sT0}, s{sT0}, s{sT1}"); e(f"s_add_u32 s{sT0}, s{sT0}, {WS_FLAG2}")
    e("s_mov_b64 s[96:97], exec"); e("s_mov_b64 exec, 1")
    e(f"buffer_store_dwordx2 v[8:9], v10, {srd(R_WS)}, s{sT0} offen sc1")
    e("s_mov_b64 exec, s[96:97]")
    g.a.label(L)
def poll_flag0(g):
    e=g.e
    L=g.lab("L_np0")
    e(f"s_cmp_lg_u32 s{sW}, 0"); e(f"s_cbranch_scc1 {L}")
    e("v_and_b32 v10, 3, v0"); e("v_and_b32 v11, 1, v10")
    e(f"s_lshl_b32 s{sT0}, s{sRB}, 1"); e(f"s_lshl_b32 s{sT1}, s{sCB}, 1")
    e(f"v_mov_b32 v12, s{sT0}"); e(f"v_mov_b32 v13, s{sT1}"); e("v_cmp_gt_u32 vcc, 2, v10"); e("v_cndmask_b32 v12, v13, v12, vcc")
    e("v_add_u32 v11, v11, v12"); e("v_lshlrev_b32 v11, 7, v11")
    poll(g, 11, WS_FLAG0, name="p0")
    g.a.label(L)

def main_path(g):
    e=g.e
    GState.base=0
    ids(g); setup_p1(g); issue_first(g); setup_frag_addr(g)
    g.stamp(1)
    bar(g, 14); g.get_tag()
    g.stamp(2)
    s_chunk(g,0); s_chunk(g,1)
    bar(g, 8); dma_s(g,6); dma_g(g,0)
    s_chunk(g,2); s_chunk(g,3)
    bar(g, 7); dma_g(g,1)
    s_chunk(g,4); s_chunk(g,5)
    bar(g, 8); dma_g(g,2); dma_g(g,3)
    s_chunk(g,6)
    g.stamp(3)
    bar(g, 12); dma_g(g,4)
    g_segment(g,[0])
    bar(g, 12); dma_g(g,5)
    g_segment(g,[1])
    bar(g, 12); dma_g(g,6)
    g_segment(g,[2])
    bar(g, 8)
    g_segment(g,[3,4])
    bar(g, 0)
    g_segment(g,[5,6])
    g.stamp(4)
    poll_flag0(g)
    bar(g)
    post_loads(g)
    e("s_waitcnt vmcnt(0)")
    scan_params(g)
    s_pass1(g)
    bar(g)
    s_publish(g)
    g.stamp(5)
    g_epilogue(g)
    g.stamp(6)
    carry_and_pass2(g)
    g.stamp(7)
    publish_flag2(g)
    g.stamp(8)
    if g.stop=="p1":
        return
    from phase2 import phase2
    phase2(g)
```

```python
from gen import *
from main_p import bar, poll, LOG2E
ACC=64; B2=128; RING=16; NRING=6
vD=4; vCe=4; vCo=5; vBT=6; vA2=8
sLB=91; sKB=92; sA2=93
def lds_reads_throttled(g, reads):
    for n,r in enumerate(reads):
        g.e(r)
        if (n+1)%8==0 and n+1<len(reads): g.e("s_waitcnt lgkmcnt(4)")
def a2_load(g, i, nk):
    e=g.e; slot=i%NRING
    for rt in range(2):
        e(f"s_add_u32 s{sT0}, s{sA2}, {rt*168*1024+i*1024}")
        e(f"buffer_load_dwordx4 {vr(RING+8*slot+4*rt,4)}, v{vA2}, {srd(R_WS)}, s{sT0} offen sc1")
def mfmas(g, i, breg):
    e=g.e; slot=i%NRING
    for rt in range(2):
        for ct in range(2):
            a=ACC+16*(2*rt+ct); c="0" if i==0 else vr(a,16)
            e(f"v_mfma_f32_32x32x16_bf16 {vr(a,16)}, {vr(RING+8*slot+4*rt,4)}, {vr(breg+4*ct,4)}, {c}")
def glu_stage(g):
    e=g.e
    g.mk_srd(R_A1, P_WD, 1792*896)
    e(f"s_mul_i32 s{sLB}, s{sW}, 24576")
    e(f"s_mul_i32 s{sKB}, s{sW}, {16*28*896}"); e(f"s_lshl_b32 s{sT0}, s{sCB7}, 7"); e(f"s_add_u32 s{sKB}, s{sKB}, s{sT0}")
    e("v_lshrrev_b32 v9, 3, v0"); e("v_and_b32 v10, 7, v0"); e("v_lshrrev_b32 v11, 4, v0"); e("v_and_b32 v11, 1, v11")
    e("v_mul_u32_u24 v12, 896, v9"); e("v_lshrrev_b32 v13, 2, v10"); e("v_xor_b32 v13, v13, v11"); e("v_lshlrev_b32 v13, 6, v13"); e("v_add_u32 v12, v12, v13")
    e("v_and_b32 v13, 3, v10"); e("v_lshlrev_b32 v13, 4, v13"); e(f"v_add_u32 v{vD}, v12, v13")
    e("v_lshrrev_b32 v9, 4, v0"); e("v_and_b32 v10, 1, v9"); e("v_lshrrev_b32 v11, 1, v9")
    e("v_lshrrev_b32 v12, 2, v0"); e("v_and_b32 v12, 3, v12"); e("v_and_b32 v13, 3, v0")
    e("v_lshlrev_b32 v14, 2, v11"); e("v_add_u32 v14, v14, v12"); e("v_lshlrev_b32 v14, 7, v14")
    e("v_lshlrev_b32 v15, 5, v10"); e("v_add_u32 v14, v14, v15"); e("v_lshlrev_b32 v15, 3, v13"); e("v_add_u32 v14, v14, v15")
    e(f"v_add_u32 v14, s{sLB}, v14"); e("v_lshrrev_b32 v12, 1, v12")
    for ct in range(2):
        e(f"v_xor_b32 v15, {ct}, v12"); e("v_lshlrev_b32 v15, 6, v15"); e(f"v_add_u32 v{vBT+ct}, v14, v15")
    def dma(k, slot):
        for h8 in range(2):
            e(f"s_add_u32 m0, s{sLB}, {slot*2048+h8*1024}"); e(f"s_add_u32 s{sT0}, s{sKB}, {(16*k+8*h8)*896}")
            e(f"buffer_load_dwordx4 v{vD}, {srd(R_A1)}, s{sT0} offen lds")
    def rd(k, slot, dst):
        out=[]
        for ct in range(2):
            for ee in range(2):
                out.append(f"ds_read_b64_tr_b16 {vr(dst+4*ct+2*ee,2)}, v{vBT+ct} offset:{slot*2048+ee*1024}")
        return out
    for k in range(12): dma(k,k)
    for k in range(12):
        e(f"s_waitcnt vmcnt({2*(11-k)})")
        for r in rd(k,k,B2+8*k): e(r)
        if k%2==1: e("s_waitcnt lgkmcnt(4)")
    e("s_waitcnt lgkmcnt(0)")
    for k in range(12,16): dma(k,k-12)
    for k in range(16,24): dma(k,k-12)
    for k in range(12,16):
        e(f"s_waitcnt vmcnt({16+2*(15-k)})")
        for r in rd(k,k-12,B2+8*k): e(r)
        if k%2==1: e("s_waitcnt lgkmcnt(4)")
    e("s_waitcnt lgkmcnt(0)")
    for k in range(24,28): dma(k,k-24)
    g._glu_rd = rd
def glu_main(g):
    e=g.e; rd=g._glu_rd
    e(f"s_lshl_b32 s{sA2}, s{sRB64}, 1"); e(f"s_mul_i32 s{sA2}, s{sA2}, {168*1024}"); e(f"s_mul_i32 s{sT0}, s{sW}, {28*1024}"); e(f"s_add_u32 s{sA2}, s{sA2}, s{sT0}"); e(f"s_add_u32 s{sA2}, s{sA2}, {WS_A2}")
    N=28
    for i in range(NRING): a2_load(g,i,N)
    slot_of = lambda k: (k-12) if k<24 else (k-24)
    for i in range(N):
        rem = min(NRING-1, N-1-i)
        if i==15:
            for r in rd(16, slot_of(16), B2+0): e(r)
        e(f"s_waitcnt vmcnt({2*rem})")
        if i>=16:
            if i+1<N:
                for r in rd(i+1, slot_of(i+1), B2+8*((i+1)&1)): e(r)
                e("s_waitcnt lgkmcnt(4)")
            else:
                e("s_waitcnt lgkmcnt(0)")
            mfmas(g,i,B2+8*(i&1))
        else:
            mfmas(g,i,B2+8*i)
        if i+NRING<N: a2_load(g,i+NRING,N)
def ssm_stage(g):
    e=g.e
    g.mk_srd(R_A1, P_CRE, 448*896); g.mk_srd(R_A2, P_CIM, 448*896)
    e(f"s_sub_u32 s{sT0}, s{sW}, 4"); e(f"s_lshl_b32 s{sLB}, s{sT0}, 14"); e(f"s_add_u32 s{sLB}, s{sLB}, 98304")
    e(f"s_mul_i32 s{sKB}, s{sCB7}, {64*896}"); e(f"s_lshl_b32 s{sT0}, s{sT0}, 8"); e(f"s_add_u32 s{sKB}, s{sKB}, s{sT0}")
    e("v_lshrrev_b32 v9, 3, v0"); e("v_and_b32 v10, 7, v0"); e("v_lshrrev_b32 v11, 4, v0")
    e("v_mul_u32_u24 v12, 896, v9")
    e("v_xor_b32 v13, v10, v11"); e("v_lshlrev_b32 v13, 4, v13"); e(f"v_add_u32 v{vCe}, v12, v13")
    e("v_or_b32 v13, 4, v11"); e("v_xor_b32 v13, v10, v13"); e("v_lshlrev_b32 v13, 4, v13"); e(f"v_add_u32 v{vCo}, v12, v13")
    e("v_and_b32 v9, 31, v0"); e("v_lshrrev_b32 v10, 5, v0"); e("v_lshlrev_b32 v10, 13, v10"); e("v_lshlrev_b32 v11, 7, v9"); e("v_add_u32 v10, v10, v11"); e(f"v_add_u32 v10, s{sLB}, v10")
    e("v_lshrrev_b32 v11, 1, v9"); e("v_and_b32 v11, 7, v11")
    for kk in range(8):
        e(f"v_xor_b32 v12, {kk}, v11"); e("v_lshlrev_b32 v12, 4, v12"); e(f"v_add_u32 v{48+kk}, v10, v12")
    def unit(u):
        for part,r in ((0,R_A1),(1,R_A2)):
            for i8 in range(8):
                e(f"s_add_u32 m0, s{sLB}, {part*8192+i8*1024}"); e(f"s_add_u32 s{sT0}, s{sKB}, {i8*8*896+u*128}")
                e(f"buffer_load_dwordx4 v{vCo if i8&1 else vCe}, {srd(r)}, s{sT0} offen lds")
        e("s_waitcnt vmcnt(0)")
        reads=[]
        for kk in range(8):
            for ct in range(2):
                reads.append(f"ds_read_b128 {vr(B2+8*(8*u+kk)+4*ct,4)}, v{48+kk} offset:{ct*4096}")
        lds_reads_throttled(g, reads)
        e("s_waitcnt lgkmcnt(0)")
    unit(0)
    L=g.lab("L_nou1")
    e(f"s_cmp_eq_u32 s{sW}, 7"); e(f"s_cbranch_scc1 {L}")
    unit(1)
    g.a.label(L)
def ssm_main(g):
    e=g.e
    e(f"s_lshl_b32 s{sA2}, s{sRB64}, 1"); e(f"s_mul_i32 s{sA2}, s{sA2}, {168*1024}"); e(f"s_sub_u32 s{sT0}, s{sW}, 4"); e(f"s_lshl_b32 s{sT0}, s{sT0}, 14")
    e(f"s_add_u32 s{sA2}, s{sA2}, s{sT0}"); e(f"s_add_u32 s{sA2}, s{sA2}, {WS_A2+112*1024}")
    L8=g.lab("L_ssm8"); Ld=g.lab("L_ssmd")
    e(f"s_cmp_eq_u32 s{sW}, 7"); e(f"s_cbranch_scc1 {L8}")
    for N in (16,8):
        if N==8: g.a.label(L8)
        for i in range(NRING): a2_load(g,i,N)
        for i in range(N):
            rem=min(NRING-1,N-1-i)
            e(f"s_waitcnt vmcnt({2*rem})")
            mfmas(g,i,B2+8*i)
            if i+NRING<N: a2_load(g,i+NRING,N)
        if N==16: e(f"s_branch {Ld}")
    g.a.label(Ld)
def final(g):
    e=g.e
    g.mk_srd(R_B, P_OUT, 2048*448*4)
    e(f"s_lshr_b32 s{sT0}, s{sW}, 2"); e(f"s_lshr_b32 s{sT1}, s{sW}, 1"); e(f"s_and_b32 s{sT1}, s{sT1}, 1"); e(f"s_and_b32 s{sT2}, s{sW}, 1")
    e(f"s_lshl_b32 s{sT3}, s{sRB64}, 6"); e(f"s_lshl_b32 s{sT0}, s{sT0}, 5"); e(f"s_add_u32 s{sT3}, s{sT3}, s{sT0}"); e(f"s_lshl_b32 s{sT2}, s{sT2}, 3"); e(f"s_add_u32 s{sT3}, s{sT3}, s{sT2}")
    e(f"s_lshl_b32 s{sT4}, s{sCB7}, 6"); e(f"s_lshl_b32 s{sT1}, s{sT1}, 5"); e(f"s_add_u32 s{sT4}, s{sT4}, s{sT1}")
    e("v_and_b32 v9, 31, v0"); e("v_lshrrev_b32 v10, 5, v0")
    e(f"v_mul_u32_u24 v11, {16*896}, v10"); e("v_lshlrev_b32 v12, 1, v9"); e("v_add_u32 v11, v11, v12")
    e(f"s_mul_i32 s{sT0}, s{sT3}, 896"); e(f"s_lshl_b32 s{sT1}, s{sT4}, 1"); e(f"s_add_u32 s{sT0}, s{sT0}, s{sT1}"); e(f"s_add_u32 s{sT1}, s{sT0}, {4*896}")
    for i in range(8):
        e(f"buffer_load_ushort v{16+i}, v11, {srd(R_X)}, s{sT0 if i<4 else sT1} offen offset:{(i&3)*896}")
    e("v_lshlrev_b32 v12, 7, v10"); e(f"s_lshl_b32 s{sT0}, s{sT3}, 3"); e(f"s_add_u32 s{sT0}, s{sT0}, {WS_STAT2}")
    for i in range(4): e(f"buffer_load_dwordx4 {vr(24+4*i,4)}, v12, {srd(R_WS)}, s{sT0} offen offset:{16*i} sc1")
    e(f"v_add_u32 v12, s{sT4}, v9"); e("v_lshlrev_b32 v12, 1, v12")
    e(f"global_load_ushort v40, v12, {sp(P_DSK)}")
    e(f"v_mul_u32_u24 v13, {16*1792}, v10"); e("v_lshlrev_b32 v12, 2, v9"); e("v_add_u32 v13, v13, v12")
    e(f"s_mul_i32 s{sKB}, s{sT3}, 1792"); e(f"s_lshl_b32 s{sT0}, s{sT4}, 2"); e(f"s_add_u32 s{sKB}, s{sKB}, s{sT0}")
    e("s_barrier")
    e(f"s_lshl_b32 s{sT0}, s{sW}, 14"); e("v_lshlrev_b32 v12, 4, v0"); e(f"v_add_u32 v14, s{sT0}, v12")
    for t in range(4):
        for q in range(4):
            e(f"ds_write_b128 v14, {vr(ACC+16*t+4*q,4)} offset:{t*4096+q*1024}")
    bar(g)
    e(f"s_lshl_b32 s{sT0}, s{sW}, 11"); e(f"v_add_u32 v14, s{sT0}, v12"); e("v_add_u32 v15, 0x10000, v14")
    R=64
    n=0
    for src in range(8):
        for k in range(2):
            e(f"ds_read_b128 {vr(R+8*src+4*k,4)}, v{14 if src<4 else 15} offset:{(src&3)*16384+k*1024}")
            n+=1
            if n==8: e("s_waitcnt lgkmcnt(4)")
    e("s_waitcnt lgkmcnt(0)")
    for i in range(8):
        e(f"v_add_f32 v{R+i}, v{R+i}, v{R+8+i}"); e(f"v_add_f32 v{R+16+i}, v{R+16+i}, v{R+24+i}")
        e(f"v_add_f32 v{R+32+i}, v{R+32+i}, v{R+40+i}"); e(f"v_add_f32 v{R+48+i}, v{R+48+i}, v{R+56+i}")
    for i in range(8):
        e(f"v_add_f32 v{R+i}, v{R+i}, v{R+16+i}"); e(f"v_add_f32 v{R+32+i}, v{R+32+i}, v{R+48+i}")
    DN=R; Y=R+32
    e("s_waitcnt vmcnt(0)")
    e("v_lshlrev_b32 v40, 16, v40")
    for i in range(8): e(f"v_lshlrev_b32 v{16+i}, 16, v{16+i}")
    for i in range(8): e(f"v_add_f32 v{48+i}, v{16+i}, v{24+2*i}")
    for i in range(8): e(f"v_mul_f32 v{48+i}, v{48+i}, v{25+2*i}")
    for i in range(8): e(f"v_fma_f32 v{Y+i}, v{48+i}, v40, v{Y+i}")
    for i in range(8): e(f"v_mul_f32 v{56+i}, {hex(f32(-LOG2E))}, v{DN+i}")
    for i in range(8): e(f"v_exp_f32 v{56+i}, v{56+i}")
    for i in range(8): e(f"v_add_f32 v{56+i}, 1.0, v{56+i}")
    for i in range(8): e(f"v_rcp_f32 v{56+i}, v{56+i}")
    for i in range(8): e(f"v_mul_f32 v{56+i}, v{DN+i}, v{56+i}")
    for i in range(8): e(f"v_fma_f32 v{56+i}, v{Y+i}, v{56+i}, v{16+i}")
    for i in range(8):
        e(f"s_add_u32 s{sT0}, s{sKB}, {i*1792}")
        e(f"buffer_store_dword v{56+i}, v13, {srd(R_B)}, s{sT0} offen")
def phase2(g):
    e=g.e
    e(f"s_cmp_ge_u32 s2, 256");
    Ls=g.lab("L_ssmw"); Lj=g.lab("L_p2j"); Ls2=g.lab("L_ssmw2"); Lj2=g.lab("L_p2j2")
    e(f"v_lshlrev_b32 v{vA2}, 4, v0")
    e(f"s_cmp_ge_u32 s{sW}, 4"); e(f"s_cbranch_scc1 {Ls}")
    glu_stage(g)
    e(f"s_branch {Lj}")
    g.a.label(Ls)
    ssm_stage(g)
    g.a.label(Lj)
    g.stamp(9)
    L=g.lab("L_np2")
    e(f"s_cmp_lg_u32 s{sW}, 0"); e(f"s_cbranch_scc1 {L}")
    e(f"s_lshr_b32 s{sT0}, s{sRB64}, 1"); e(f"s_lshl_b32 s{sT0}, s{sT0}, 7"); e(f"s_add_u32 s{sT0}, s{sT0}, {WS_FLAG2}")
    e(f"s_lshl_b32 s{sT1}, s{sRB64}, 7"); e(f"s_add_u32 s{sT1}, s{sT1}, {WS_FLAG0}")
    e("v_lshlrev_b32 v11, 3, v0"); e(f"v_add_u32 v11, s{sT0}, v11"); e(f"v_mov_b32 v12, s{sT1}")
    e("v_cmp_gt_u32 vcc, 14, v0"); e("v_cndmask_b32 v11, v12, v11, vcc")
    poll(g, 11, 0, name="p2")
    g.a.label(L)
    e("s_barrier")
    g.stamp(10)
    e(f"s_cmp_ge_u32 s{sW}, 4"); e(f"s_cbranch_scc1 {Ls2}")
    glu_main(g)
    e(f"s_branch {Lj2}")
    g.a.label(Ls2)
    ssm_main(g)
    g.a.label(Lj2)
    g.stamp(11)
    final(g)
    g.stamp(12)
```

```python
import sys, os
sys.path.insert(0, os.path.dirname(os.path.abspath(__file__)))
from asmlib import Asm
KN = "recurrent_scan__ssm_conv_s5__glu_gated_glu__prompt_kernel"
REF = "recurrent_scan__ssm_conv_s5__glu_gated_glu__prompt.s.ref"

WS_EPOCH = 0
WS_FLAG0 = 0x1000
WS_FLAG2 = 0x3000
WS_EG    = 0x10000
WS_STATS = 0x30000
WS_STAT2 = 0x38000
WS_CSG   = 0x40000
WS_CSU   = 0x42000
WS_RS    = 0x44000
WS_A2    = 0x100000
WS_SIZE  = WS_A2 + 64*168*1024

P_X, P_LRE, P_LIM, P_BRE, P_BIM, P_CRE, P_CIM, P_LDT = 16,18,20,22,24,26,28,30
P_DSK, P_BX, P_WG, P_WU, P_WD, P_OUT, P_DBG, P_WS = 32,34,36,38,40,42,44,46
R_X, R_B, R_WG, R_WU, R_WS, R_A1, R_A2 = 48,52,56,60,64,68,72
sW, sR, sCG, sRB, sCB, sTL, sTH = 76,77,78,79,80,81,82
sRB64, sCB7 = 83, 84
sT0,sT1,sT2,sT3,sT4,sT5 = 85,86,87,88,89,90
sXB, sSB, sGB = 91,92,93
sCNT = 94

def srd(r): return f"s[{r}:{r+3}]"
def sp(r): return f"s[{r}:{r+1}]"
def vr(a,n): return f"v[{a}:{a+n-1}]"

class Gen:
    def __init__(self, stop=None, stamps=False):
        self.a = Asm(); self.e = self.a.e; self.stop = stop; self.stamps = stamps
        self.nlab = 0
    def lab(self, p="L"):
        self.nlab += 1; return f"{p}_{self.nlab}"
    def mk_srd(self, r, ptr, size):
        e=self.e
        e(f"s_mov_b32 s{r}, s{ptr}"); e(f"s_mov_b32 s{r+1}, s{ptr+1}"); e(f"s_mov_b32 s{r+2}, {size}"); e(f"s_mov_b32 s{r+3}, 0x00020000")
    def stamp(self, idx):
        if not self.stamps: return
        e=self.e
        e("s_memrealtime s[100:101]"); e("s_waitcnt lgkmcnt(0)")
        e(f"s_mov_b32 s{3+idx}, s100")
    def prologue(self):
        e=self.e
        e("s_cmp_ge_u32 s2, 256"); e("s_cbranch_scc1 L_end")
        e(f"s_load_dwordx16 s[16:31], s[0:1], 0"); e(f"s_load_dwordx16 s[32:47], s[0:1], 64")
        self.stamp(0)
        e("v_lshrrev_b32 v1, 6, v0"); e("v_and_b32 v0, 63, v0")
        e(f"v_readfirstlane_b32 s{sW}, v1")
        e("s_waitcnt lgkmcnt(0)")
        self.mk_srd(R_WS, P_WS, WS_SIZE)
        e("v_mov_b32 v1, 0")
        e(f"buffer_load_dwordx2 v[2:3], v1, {srd(R_WS)}, 0 offen sc1")
        e(f"s_and_b32 s{sR}, s{sW}, 3"); e(f"s_lshr_b32 s{sCG}, s{sW}, 2")
        e("s_cmp_lt_u32 s2, 32"); e("s_cbranch_scc1 L_helper")
    def get_tag(self):
        e=self.e
        e(f"v_readfirstlane_b32 s{sTL}, v2"); e(f"v_readfirstlane_b32 s{sTH}, v3")
        e(f"s_add_u32 s{sTL}, s{sTL}, 1")
    def unpack(self, dst_lo, dst_hi, src):
        self.e(f"v_lshlrev_b32 v{dst_lo}, 16, v{src}"); self.e(f"v_and_b32 v{dst_hi}, 0xffff0000, v{src}")
    def red8(self, r, tmp=None):
        e=self.e
        e(f"v_add_f32_dpp v{r}, v{r}, v{r} quad_perm:[1,0,3,2] row_mask:0xf bank_mask:0xf")
        e(f"v_add_f32_dpp v{r}, v{r}, v{r} quad_perm:[2,3,0,1] row_mask:0xf bank_mask:0xf")
        e(f"v_add_f32_dpp v{r}, v{r}, v{r} row_half_mirror row_mask:0xf bank_mask:0xf")
    def rbf(self, d, s):
        self.e(f"v_cvt_pk_bf16_f32 v{d}, v{s}, v{s}"); self.e(f"v_and_b32 v{d}, 0xffff0000, v{d}")
    def helper(self):
        e=self.e; a=self.a
        a.label("L_helper")
        self.mk_srd(R_X, P_X, 2048*896); self.mk_srd(R_WG, P_WG, 448*3584); self.mk_srd(R_WU, P_WU, 448*3584)
        e(f"s_lshr_b32 s{sT0}, s{sW}, 1"); e(f"s_and_b32 s{sT0}, s{sT0}, 1"); e(f"s_cmp_eq_u32 s{sT0}, 0")
        e(f"s_cselect_b32 s{R_B}, s{P_BRE}, s{P_BIM}"); e(f"s_cselect_b32 s{R_B+1}, s{P_BRE+1}, s{P_BIM+1}")
        e(f"s_mov_b32 s{R_B+2}, {448*896}"); e(f"s_mov_b32 s{R_B+3}, 0x00020000")
        e("v_lshrrev_b32 v4, 3, v0"); e("v_and_b32 v5, 7, v0"); e("v_lshlrev_b32 v5, 4, v5")
        e("v_mul_u32_u24 v6, 896, v4"); e("v_add_u32 v6, v6, v5")
        e(f"s_lshl_b32 s{sT0}, s2, 6"); e(f"s_lshl_b32 s{sT1}, s{sW}, 3"); e(f"s_add_u32 s{sXB}, s{sT0}, s{sT1}")
        e(f"s_mul_i32 s{sT2}, s{sXB}, 896")
        for j in range(7): e(f"buffer_load_dwordx4 {vr(16+4*j,4)}, v6, {srd(R_X)}, s{sT2} offen offset:{128*j}")
        lab_skip = self.lab("L_hskip")
        e("s_cmp_ge_u32 s2, 28"); e(f"s_cbranch_scc1 {lab_skip}")
        e("v_mul_u32_u24 v7, 3584, v4"); e("v_add_u32 v7, v7, v5")
        e(f"s_mul_i32 s{sT3}, s{sW}, {56*3584}"); e(f"s_lshl_b32 s{sT4}, s2, 7"); e(f"s_add_u32 s{sT3}, s{sT3}, s{sT4}")
        for j in range(7):
            e(f"s_add_u32 s{sT4}, s{sT3}, {j*8*3584}")
            e(f"buffer_load_dwordx4 {vr(48+4*j,4)}, v7, {srd(R_WG)}, s{sT4} offen")
            e(f"buffer_load_dwordx4 {vr(80+4*j,4)}, v7, {srd(R_WU)}, s{sT4} offen")
        e(f"s_and_b32 s{sT4}, s{sW}, 1"); e(f"s_lshl_b32 s{sT4}, s{sT4}, 3"); e(f"s_lshl_b32 s{sT5}, s2, 4"); e(f"s_add_u32 s{sSB}, s{sT4}, s{sT5}")
        e(f"s_mul_i32 s{sT4}, s{sSB}, 896")
        for j in range(7): e(f"buffer_load_dwordx4 {vr(112+4*j,4)}, v6, {srd(R_B)}, s{sT4} offen offset:{128*j}")
        e("s_waitcnt vmcnt(21)")
        lab_j = self.lab("L_hj")
        e(f"s_branch {lab_j}")
        a.label(lab_skip)
        e("s_waitcnt vmcnt(0)")
        a.label(lab_j)
        self.get_tag()
        for i in range(28): self.unpack(144+2*i, 145+2*i, 16+i)
        for k in range(4): e(f"v_add_f32 v{8+k}, v{144+k}, v{148+k}")
        for i in range(8,56): e(f"v_add_f32 v{8+i%4}, v{8+i%4}, v{144+i}")
        e("v_add_f32 v8, v8, v9"); e("v_add_f32 v10, v10, v11"); e("v_add_f32 v8, v8, v10")
        self.red8(8)
        e(f"v_mul_f32 v8, {hex(f32(1.0/448))}, v8")
        for k in range(4): e(f"v_mov_b32 v{12+k}, 0")
        for i in range(56):
            e(f"v_sub_f32 v{144+i}, v{144+i}, v8")
        for i in range(56):
            e(f"v_fmac_f32 v{12+i%4}, v{144+i}, v{144+i}")
        e("v_add_f32 v12, v12, v13"); e("v_add_f32 v14, v14, v15"); e("v_add_f32 v12, v12, v14")
        self.red8(12)
        e(f"v_mul_f32 v12, {hex(f32(1.0/448))}, v12")
        self.rbf(8, 8); self.rbf(12, 12)
        e(f"v_add_f32 v12, {hex(f32(1e-5))}, v12"); self.rbf(12, 12)
        e("v_sqrt_f32 v12, v12"); self.rbf(12, 12)
        e("v_rcp_f32 v13, v12")
        e("v_fma_f32 v14, -v12, v13, 2.0"); e("v_mul_f32 v13, v13, v14")
        e("v_sub_f32 v200, 0, v8"); e("v_mov_b32 v201, v13"); e("v_mov_b32 v202, v12"); e("v_mov_b32 v203, 0")
        e(f"v_add_u32 v9, s{sXB}, v4")
        e("v_lshlrev_b32 v10, 4, v9"); e("v_lshlrev_b32 v11, 3, v9")
        e("v_cmp_eq_u32 vcc, 0, v5"); e("s_and_saveexec_b64 s[96:97], vcc")
        e(f"s_mov_b32 s{sT0}, {WS_STATS}"); e(f"s_mov_b32 s{sT1}, {WS_STAT2}")
        e(f"buffer_store_dwordx4 v[200:203], v10, {srd(R_WS)}, s{sT0} offen sc1")
        e(f"buffer_store_dwordx2 v[200:201], v11, {srd(R_WS)}, s{sT1} offen sc1")
        e("s_mov_b64 exec, s[96:97]")
        lab_done = self.lab("L_hdone")
        e("s_cmp_ge_u32 s2, 28"); e(f"s_cbranch_scc1 {lab_done}")
        e("s_waitcnt vmcnt(2)")
        for mi,base in enumerate((48,80)):
            acc = 144+8*mi
            for j in range(7):
                for d in range(4):
                    self.unpack(8, 9, base+4*j+d)
                    if j==0:
                        e(f"v_mov_b32 v{acc+2*d}, v8"); e(f"v_mov_b32 v{acc+2*d+1}, v9")
                    else:
                        e(f"v_add_f32 v{acc+2*d}, v{acc+2*d}, v8"); e(f"v_add_f32 v{acc+2*d+1}, v{acc+2*d+1}, v9")
        for i in range(16):
            r = 144+i
            e(f"v_add_f32_dpp v{r}, v{r}, v{r} row_ror:8 row_mask:0xf bank_mask:0xf")
        for i in range(16):
            r = 144+i
            e(f"v_mov_b32 v{160+i}, v{r}")
        for i in range(16):
            e(f"v_permlane16_swap_b32 v{144+i}, v{160+i}")
        for i in range(16):
            e(f"v_add_f32 v{144+i}, v{144+i}, v{160+i}")
        for i in range(16):
            e(f"v_mov_b32 v{160+i}, v{144+i}")
        for i in range(16):
            e(f"v_permlane32_swap_b32 v{144+i}, v{160+i}")
        for i in range(16):
            e(f"v_add_f32 v{144+i}, v{144+i}, v{160+i}")
        e(f"s_lshl_b32 s{sT0}, s{sW}, 8"); e("v_lshlrev_b32 v8, 1, v5"); e(f"v_add_u32 v8, s{sT0}, v8")
        e("v_cmp_gt_u32 vcc, 8, v0"); e("s_and_saveexec_b64 s[96:97], vcc")
        e("ds_write_b128 v8, v[144:147]"); e("ds_write_b128 v8, v[148:151] offset:16")
        e("ds_write_b128 v8, v[152:155] offset:2048"); e("ds_write_b128 v8, v[156:159] offset:2064")
        e("s_mov_b64 exec, s[96:97]")
        e("v_mov_b32 v10, 0"); e("v_mov_b32 v11, 0")
        for i in range(28):
            self.unpack(8, 9, 112+i); e("v_add_f32 v10, v10, v8"); e("v_add_f32 v11, v11, v9")
        e("v_add_f32 v10, v10, v11"); self.red8(10)
        e(f"s_lshr_b32 s{sT0}, s{sW}, 1"); e(f"s_and_b32 s{sT0}, s{sT0}, 1"); e(f"s_lshl_b32 s{sT0}, s{sT0}, 11"); e(f"s_add_u32 s{sT0}, s{sT0}, {WS_RS}")
        e(f"v_add_u32 v11, s{sSB}, v4"); e("v_lshlrev_b32 v11, 2, v11")
        e("v_cmp_eq_u32 vcc, 0, v5"); e("s_and_saveexec_b64 s[96:97], vcc")
        e(f"buffer_store_dword v10, v11, {srd(R_WS)}, s{sT0} offen sc1")
        e("s_mov_b64 exec, s[96:97]")
        e("s_waitcnt lgkmcnt(0)"); e("s_barrier")
        lab_n = self.lab("L_hn")
        e(f"s_cmp_ge_u32 s{sW}, 2"); e(f"s_cbranch_scc1 {lab_n}")
        e(f"s_lshl_b32 s{sT0}, s{sW}, 11"); e("v_lshlrev_b32 v8, 2, v0"); e(f"v_add_u32 v9, s{sT0}, v8")
        for k in range(8): e(f"ds_read_b32 v{16+k}, v9 offset:{256*k}")
        e("s_waitcnt lgkmcnt(0)")
        for k in range(1,8): e(f"v_add_f32 v16, v16, v{16+k}")
        e(f"s_lshl_b32 s{sT0}, s{sW}, 13"); e(f"s_add_u32 s{sT0}, s{sT0}, {WS_CSG}"); e(f"s_lshl_b32 s{sT1}, s2, 8"); e(f"s_add_u32 s{sT0}, s{sT0}, s{sT1}")
        e(f"buffer_store_dword v16, v8, {srd(R_WS)}, s{sT0} offen sc1")
        a.label(lab_n)
        a.label(lab_done)
        e("s_waitcnt vmcnt(0)"); e("s_barrier")
        e(f"s_cmp_lg_u32 s{sW}, 0"); e("s_cbranch_scc1 L_end")
        e(f"v_mov_b32 v8, s{sTL}"); e(f"v_mov_b32 v9, s{sTH}"); e(f"s_lshl_b32 s{sT0}, s2, 7"); e(f"s_add_u32 s{sT0}, s{sT0}, {WS_FLAG0}")
        e("v_mov_b32 v10, 0")
        e("s_mov_b64 s[96:97], exec"); e("s_mov_b64 exec, 1")
        e(f"buffer_store_dwordx2 v[8:9], v10, {srd(R_WS)}, s{sT0} offen sc1")
        e("s_mov_b64 exec, s[96:97]")
        e("s_cmp_lg_u32 s2, 0"); e("s_cbranch_scc1 L_end")
        if self.stop in ("helper",):
            e("s_branch L_epoch_store")
        e("v_mul_u32_u24 v11, 37, v0"); e("v_lshrrev_b32 v11, 8, v11")
        e("v_mul_u32_u24 v12, 7, v11"); e("v_sub_u32 v12, v0, v12")
        e("v_lshlrev_b32 v11, 8, v11"); e("v_lshlrev_b32 v12, 4, v12"); e("v_add_u32 v11, v11, v12")
        e("v_cmp_gt_u32 vcc, 56, v0"); e("v_cndmask_b32 v11, 0, v11, vcc")
        e("v_and_b32 v12, 31, v0"); e("v_lshlrev_b32 v12, 7, v12")
        e(f"s_mov_b32 s{sT0}, {WS_FLAG2}"); e(f"s_mov_b32 s{sT1}, {WS_FLAG2+128}"); e(f"s_mov_b32 s{sT2}, {WS_FLAG0}")
        e(f"s_mov_b32 s{sCNT}, 0")
        a.label("L_ep_poll")
        e(f"buffer_load_dwordx4 v[16:19], v11, {srd(R_WS)}, s{sT0} offen sc1")
        e(f"buffer_load_dwordx4 v[20:23], v11, {srd(R_WS)}, s{sT1} offen sc1")
        e(f"buffer_load_dwordx2 v[24:25], v12, {srd(R_WS)}, s{sT2} offen sc1")
        e("s_waitcnt vmcnt(0)")
        for k in (16,18,20,22,24):
            e(f"v_xor_b32 v{k}, s{sTL}, v{k}"); e(f"v_xor_b32 v{k+1}, s{sTH}, v{k+1}"); e(f"v_or_b32 v{k}, v{k}, v{k+1}")
        e("v_or_b32 v16, v16, v18"); e("v_or_b32 v20, v20, v22"); e("v_or_b32 v16, v16, v20"); e("v_or_b32 v16, v16, v24")
        e("v_cmp_ne_u32 vcc, 0, v16")
        e("s_cbranch_vccz L_epoch_store")
        e("s_sleep 8")
        e(f"s_add_u32 s{sCNT}, s{sCNT}, 1"); e(f"s_cmp_lt_u32 s{sCNT}, 20000"); e("s_cbranch_scc1 L_ep_poll")
        a.label("L_epoch_store")
        e(f"v_mov_b32 v8, s{sTL}"); e(f"v_mov_b32 v9, s{sTH}"); e("v_mov_b32 v10, 0")
        e("s_mov_b64 exec, 1")
        e(f"buffer_store_dwordx2 v[8:9], v10, {srd(R_WS)}, 0 offen sc1")
        e("s_branch L_end")
import struct
def f32(x): return struct.unpack("<I", struct.pack("<f", x))[0]

def build(stop=None, stamps=False):
    from main_p import main_path
    g = Gen(stop, stamps)
    g.prologue()
    main_path(g)
    if stamps:
        e=g.e
        e(f"s_lshl_b32 s{sT0}, s2, 3"); e(f"s_add_u32 s{sT0}, s{sT0}, s{sW}"); e(f"s_lshl_b32 s{sT0}, s{sT0}, 6"); e(f"s_add_u32 s{sT0}, s{sT0}, 0x60000")
        e("v_mov_b32 v1, 0"); e("s_mov_b64 exec, 1")
        for i in range(13):
            e(f"v_mov_b32 v2, s{3+i}"); e(f"buffer_store_dword v2, v1, {srd(R_WS)}, s{sT0} offen offset:{4*i}")
    g.e("s_branch L_end")
    g.helper()
    g.a.label("L_end")
    body = g.a.finalize()
    hdr = open(REF).read()
    pre = hdr[:hdr.index("; Override")]
    txt = f"""{pre}; @launch grid=(256,1,1) block=(512,1,1) lds=163840
.amdgcn_target "amdgcn-amd-amdhsa--gfx950"
.text
.globl {KN}
.p2align 8
.type {KN},@function
{KN}:
{body}
    s_endpgm
.section .rodata,"a"
.p2align 6
.amdhsa_kernel {KN}
  .amdhsa_next_free_vgpr 256
  .amdhsa_next_free_sgpr 102
  .amdhsa_accum_offset 256
  .amdhsa_group_segment_fixed_size 0
  .amdhsa_kernarg_size 128
  .amdhsa_user_sgpr_count 2
  .amdhsa_user_sgpr_kernarg_segment_ptr 1
  .amdhsa_system_sgpr_workgroup_id_x 1
.end_amdhsa_kernel
"""
    return txt, g
if __name__ == "__main__":
    import argparse
    ap = argparse.ArgumentParser(); ap.add_argument("out"); ap.add_argument("--stop"); ap.add_argument("--stamps", action="store_true")
    a = ap.parse_args()
    txt, g = build(a.stop, a.stamps)
    open(a.out, "w").write(txt)
    print("lines", txt.count("\n"), "nops inserted", g.a.nnop)
```

```python
import sys, os
sys.path.insert(0, os.path.dirname(os.path.abspath(__file__)))
from asmlib import Asm
KN = "recurrent_scan__ssm_conv_s5__glu_gated_glu__prompt_kernel"
REF = "recurrent_scan__ssm_conv_s5__glu_gated_glu__prompt.s.ref"

WS_EPOCH = 0
WS_FLAG0 = 0x1000
WS_FLAG2 = 0x3000
WS_EG    = 0x10000
WS_STATS = 0x30000
WS_STAT2 = 0x38000
WS_CSG   = 0x40000
WS_CSU   = 0x42000
WS_RS    = 0x44000
WS_A2    = 0x100000
WS_SIZE  = WS_A2 + 64*168*1024

P_X, P_LRE, P_LIM, P_BRE, P_BIM, P_CRE, P_CIM, P_LDT = 16,18,20,22,24,26,28,30
P_DSK, P_BX, P_WG, P_WU, P_WD, P_OUT, P_DBG, P_WS = 32,34,36,38,40,42,44,46
R_X, R_B, R_WG, R_WU, R_WS, R_A1, R_A2 = 48,52,56,60,64,68,72
sW, sR, sCG, sRB, sCB, sTL, sTH = 76,77,78,79,80,81,82
sRB64, sCB7 = 83, 84
sT0,sT1,sT2,sT3,sT4,sT5 = 85,86,87,88,89,90
sXB, sSB, sGB = 91,92,93
sCNT = 94

def srd(r): return f"s[{r}:{r+3}]"
def sp(r): return f"s[{r}:{r+1}]"
def vr(a,n): return f"v[{a}:{a+n-1}]"

class Gen:
    def __init__(self, stop=None, stamps=False):
        self.a = Asm(); self.e = self.a.e; self.stop = stop; self.stamps = stamps
        self.nlab = 0
    def lab(self, p="L"):
        self.nlab += 1; return f"{p}_{self.nlab}"
    def mk_srd(self, r, ptr, size):
        e=self.e
        e(f"s_mov_b32 s{r}, s{ptr}"); e(f"s_mov_b32 s{r+1}, s{ptr+1}"); e(f"s_mov_b32 s{r+2}, {size}"); e(f"s_mov_b32 s{r+3}, 0x00020000")
    def stamp(self, idx):
        if not self.stamps: return
        e=self.e
        e("s_memrealtime s[100:101]"); e("s_waitcnt lgkmcnt(0)")
        e(f"s_mov_b32 s{3+idx}, s100")
    def prologue(self):
        e=self.e
        e("s_cmp_ge_u32 s2, 256"); e("s_cbranch_scc1 L_end")
        e(f"s_load_dwordx16 s[16:31], s[0:1], 0"); e(f"s_load_dwordx16 s[32:47], s[0:1], 64")
        self.stamp(0)
        e("v_lshrrev_b32 v1, 6, v0"); e("v_and_b32 v0, 63, v0")
        e(f"v_readfirstlane_b32 s{sW}, v1")
        e("s_waitcnt lgkmcnt(0)")
        self.mk_srd(R_WS, P_WS, WS_SIZE)
        e("v_mov_b32 v1, 0")
        e(f"buffer_load_dwordx2 v[2:3], v1, {srd(R_WS)}, 0 offen sc1")
        e(f"s_and_b32 s{sR}, s{sW}, 3"); e(f"s_lshr_b32 s{sCG}, s{sW}, 2")
        e("s_cmp_lt_u32 s2, 32"); e("s_cbranch_scc1 L_helper")
    def get_tag(self):
        e=self.e
        e(f"v_readfirstlane_b32 s{sTL}, v2"); e(f"v_readfirstlane_b32 s{sTH}, v3")
        e(f"s_add_u32 s{sTL}, s{sTL}, 1")
    def unpack(self, dst_lo, dst_hi, src):
        self.e(f"v_lshlrev_b32 v{dst_lo}, 16, v{src}"); self.e(f"v_and_b32 v{dst_hi}, 0xffff0000, v{src}")
    def red8(self, r, tmp=None):
        e=self.e
        e(f"v_add_f32_dpp v{r}, v{r}, v{r} quad_perm:[1,0,3,2] row_mask:0xf bank_mask:0xf")
        e(f"v_add_f32_dpp v{r}, v{r}, v{r} quad_perm:[2,3,0,1] row_mask:0xf bank_mask:0xf")
        e(f"v_add_f32_dpp v{r}, v{r}, v{r} row_half_mirror row_mask:0xf bank_mask:0xf")
    def rbf(self, d, s):
        self.e(f"v_cvt_pk_bf16_f32 v{d}, v{s}, v{s}"); self.e(f"v_and_b32 v{d}, 0xffff0000, v{d}")
    def helper(self):
        e=self.e; a=self.a
        a.label("L_helper")
        self.mk_srd(R_X, P_X, 2048*896); self.mk_srd(R_WG, P_WG, 448*3584); self.mk_srd(R_WU, P_WU, 448*3584)
        e(f"s_lshr_b32 s{sT0}, s{sW}, 1"); e(f"s_and_b32 s{sT0}, s{sT0}, 1"); e(f"s_cmp_eq_u32 s{sT0}, 0")
        e(f"s_cselect_b32 s{R_B}, s{P_BRE}, s{P_BIM}"); e(f"s_cselect_b32 s{R_B+1}, s{P_BRE+1}, s{P_BIM+1}")
        e(f"s_mov_b32 s{R_B+2}, {448*896}"); e(f"s_mov_b32 s{R_B+3}, 0x00020000")
        e("v_lshrrev_b32 v4, 3, v0"); e("v_and_b32 v5, 7, v0"); e("v_lshlrev_b32 v5, 4, v5")
        e("v_mul_u32_u24 v6, 896, v4"); e("v_add_u32 v6, v6, v5")
        e(f"s_lshl_b32 s{sT0}, s2, 6"); e(f"s_lshl_b32 s{sT1}, s{sW}, 3"); e(f"s_add_u32 s{sXB}, s{sT0}, s{sT1}")
        e(f"s_mul_i32 s{sT2}, s{sXB}, 896")
        for j in range(7): e(f"buffer_load_dwordx4 {vr(16+4*j,4)}, v6, {srd(R_X)}, s{sT2} offen offset:{128*j}")
        lab_skip = self.lab("L_hskip")
        e("s_cmp_ge_u32 s2, 28"); e(f"s_cbranch_scc1 {lab_skip}")
        e("v_mul_u32_u24 v7, 3584, v4"); e("v_add_u32 v7, v7, v5")
        e(f"s_mul_i32 s{sT3}, s{sW}, {56*3584}"); e(f"s_lshl_b32 s{sT4}, s2, 7"); e(f"s_add_u32 s{sT3}, s{sT3}, s{sT4}")
        for j in range(7):
            e(f"s_add_u32 s{sT4}, s{sT3}, {j*8*3584}")
            e(f"buffer_load_dwordx4 {vr(48+4*j,4)}, v7, {srd(R_WG)}, s{sT4} offen")
            e(f"buffer_load_dwordx4 {vr(80+4*j,4)}, v7, {srd(R_WU)}, s{sT4} offen")
        e(f"s_and_b32 s{sT4}, s{sW}, 1"); e(f"s_lshl_b32 s{sT4}, s{sT4}, 3"); e(f"s_lshl_b32 s{sT5}, s2, 4"); e(f"s_add_u32 s{sSB}, s{sT4}, s{sT5}")
        e(f"s_mul_i32 s{sT4}, s{sSB}, 896")
        for j in range(7): e(f"buffer_load_dwordx4 {vr(112+4*j,4)}, v6, {srd(R_B)}, s{sT4} offen offset:{128*j}")
        e("s_waitcnt vmcnt(21)")
        lab_j = self.lab("L_hj")
        e(f"s_branch {lab_j}")
        a.label(lab_skip)
        e("s_waitcnt vmcnt(0)")
        a.label(lab_j)
        self.get_tag()
        for i in range(28): self.unpack(144+2*i, 145+2*i, 16+i)
        for k in range(4): e(f"v_add_f32 v{8+k}, v{144+k}, v{148+k}")
        for i in range(8,56): e(f"v_add_f32 v{8+i%4}, v{8+i%4}, v{144+i}")
        e("v_add_f32 v8, v8, v9"); e("v_add_f32 v10, v10, v11"); e("v_add_f32 v8, v8, v10")
        self.red8(8)
        e(f"v_mul_f32 v8, {hex(f32(1.0/448))}, v8")
        for k in range(4): e(f"v_mov_b32 v{12+k}, 0")
        for i in range(56):
            e(f"v_sub_f32 v{144+i}, v{144+i}, v8")
        for i in range(56):
            e(f"v_fmac_f32 v{12+i%4}, v{144+i}, v{144+i}")
        e("v_add_f32 v12, v12, v13"); e("v_add_f32 v14, v14, v15"); e("v_add_f32 v12, v12, v14")
        self.red8(12)
        e(f"v_mul_f32 v12, {hex(f32(1.0/448))}, v12")
        self.rbf(8, 8); self.rbf(12, 12)
        e(f"v_add_f32 v12, {hex(f32(1e-5))}, v12"); self.rbf(12, 12)
        e("v_sqrt_f32 v12, v12"); self.rbf(12, 12)
        e("v_rcp_f32 v13, v12")
        e("v_fma_f32 v14, -v12, v13, 2.0"); e("v_mul_f32 v13, v13, v14")
        e("v_sub_f32 v200, 0, v8"); e("v_mov_b32 v201, v13"); e("v_mov_b32 v202, v12"); e("v_mov_b32 v203, 0")
        e(f"v_add_u32 v9, s{sXB}, v4")
        e("v_lshlrev_b32 v10, 4, v9"); e("v_lshlrev_b32 v11, 3, v9")
        e("v_cmp_eq_u32 vcc, 0, v5"); e("s_and_saveexec_b64 s[96:97], vcc")
        e(f"s_mov_b32 s{sT0}, {WS_STATS}"); e(f"s_mov_b32 s{sT1}, {WS_STAT2}")
        e(f"buffer_store_dwordx4 v[200:203], v10, {srd(R_WS)}, s{sT0} offen sc1")
        e(f"buffer_store_dwordx2 v[200:201], v11, {srd(R_WS)}, s{sT1} offen sc1")
        e("s_mov_b64 exec, s[96:97]")
        lab_done = self.lab("L_hdone")
        e("s_cmp_ge_u32 s2, 28"); e(f"s_cbranch_scc1 {lab_done}")
        e("s_waitcnt vmcnt(2)")
        for mi,base in enumerate((48,80)):
            acc = 144+8*mi
            for j in range(7):
                for d in range(4):
                    self.unpack(8, 9, base+4*j+d)
                    if j==0:
                        e(f"v_mov_b32 v{acc+2*d}, v8"); e(f"v_mov_b32 v{acc+2*d+1}, v9")
                    else:
                        e(f"v_add_f32 v{acc+2*d}, v{acc+2*d}, v8"); e(f"v_add_f32 v{acc+2*d+1}, v{acc+2*d+1}, v9")
        for i in range(16):
            r = 144+i
            e(f"v_add_f32_dpp v{r}, v{r}, v{r} row_ror:8 row_mask:0xf bank_mask:0xf")
        for i in range(16):
            r = 144+i
            e(f"v_mov_b32 v{160+i}, v{r}")
        for i in range(16):
            e(f"v_permlane16_swap_b32 v{144+i}, v{160+i}")
        for i in range(16):
            e(f"v_add_f32 v{144+i}, v{144+i}, v{160+i}")
        for i in range(16):
            e(f"v_mov_b32 v{160+i}, v{144+i}")
        for i in range(16):
            e(f"v_permlane32_swap_b32 v{144+i}, v{160+i}")
        for i in range(16):
            e(f"v_add_f32 v{144+i}, v{144+i}, v{160+i}")
        e(f"s_lshl_b32 s{sT0}, s{sW}, 8"); e("v_lshlrev_b32 v8, 1, v5"); e(f"v_add_u32 v8, s{sT0}, v8")
        e("v_cmp_gt_u32 vcc, 8, v0"); e("s_and_saveexec_b64 s[96:97], vcc")
        e("ds_write_b128 v8, v[144:147]"); e("ds_write_b128 v8, v[148:151] offset:16")
        e("ds_write_b128 v8, v[152:155] offset:2048"); e("ds_write_b128 v8, v[156:159] offset:2064")
        e("s_mov_b64 exec, s[96:97]")
        e("v_mov_b32 v10, 0"); e("v_mov_b32 v11, 0")
        for i in range(28):
            self.unpack(8, 9, 112+i); e("v_add_f32 v10, v10, v8"); e("v_add_f32 v11, v11, v9")
        e("v_add_f32 v10, v10, v11"); self.red8(10)
        e(f"s_lshr_b32 s{sT0}, s{sW}, 1"); e(f"s_and_b32 s{sT0}, s{sT0}, 1"); e(f"s_lshl_b32 s{sT0}, s{sT0}, 11"); e(f"s_add_u32 s{sT0}, s{sT0}, {WS_RS}")
        e(f"v_add_u32 v11, s{sSB}, v4"); e("v_lshlrev_b32 v11, 2, v11")
        e("v_cmp_eq_u32 vcc, 0, v5"); e("s_and_saveexec_b64 s[96:97], vcc")
        e(f"buffer_store_dword v10, v11, {srd(R_WS)}, s{sT0} offen sc1")
        e("s_mov_b64 exec, s[96:97]")
        e("s_waitcnt lgkmcnt(0)"); e("s_barrier")
        lab_n = self.lab("L_hn")
        e(f"s_cmp_ge_u32 s{sW}, 2"); e(f"s_cbranch_scc1 {lab_n}")
        e(f"s_lshl_b32 s{sT0}, s{sW}, 11"); e("v_lshlrev_b32 v8, 2, v0"); e(f"v_add_u32 v9, s{sT0}, v8")
        for k in range(8): e(f"ds_read_b32 v{16+k}, v9 offset:{256*k}")
        e("s_waitcnt lgkmcnt(0)")
        for k in range(1,8): e(f"v_add_f32 v16, v16, v{16+k}")
        e(f"s_lshl_b32 s{sT0}, s{sW}, 13"); e(f"s_add_u32 s{sT0}, s{sT0}, {WS_CSG}"); e(f"s_lshl_b32 s{sT1}, s2, 8"); e(f"s_add_u32 s{sT0}, s{sT0}, s{sT1}")
        e(f"buffer_store_dword v16, v8, {srd(R_WS)}, s{sT0} offen sc1")
        a.label(lab_n)
        a.label(lab_done)
        e("s_waitcnt vmcnt(0)"); e("s_barrier")
        e(f"s_cmp_lg_u32 s{sW}, 0"); e("s_cbranch_scc1 L_end")
        e(f"v_mov_b32 v8, s{sTL}"); e(f"v_mov_b32 v9, s{sTH}"); e(f"s_lshl_b32 s{sT0}, s2, 7"); e(f"s_add_u32 s{sT0}, s{sT0}, {WS_FLAG0}")
        e("v_mov_b32 v10, 0")
        e("s_mov_b64 s[96:97], exec"); e("s_mov_b64 exec, 1")
        e(f"buffer_store_dwordx2 v[8:9], v10, {srd(R_WS)}, s{sT0} offen sc1")
        e("s_mov_b64 exec, s[96:97]")
        e("s_cmp_lg_u32 s2, 0"); e("s_cbranch_scc1 L_end")
        if self.stop in ("helper",):
            e("s_branch L_epoch_store")
        e("v_mul_u32_u24 v11, 37, v0"); e("v_lshrrev_b32 v11, 8, v11")
        e("v_mul_u32_u24 v12, 7, v11"); e("v_sub_u32 v12, v0, v12")
        e("v_lshlrev_b32 v11, 8, v11"); e("v_lshlrev_b32 v12, 4, v12"); e("v_add_u32 v11, v11, v12")
        e("v_cmp_gt_u32 vcc, 56, v0"); e("v_cndmask_b32 v11, 0, v11, vcc")
        e("v_and_b32 v12, 31, v0"); e("v_lshlrev_b32 v12, 7, v12")
        e(f"s_mov_b32 s{sT0}, {WS_FLAG2}"); e(f"s_mov_b32 s{sT1}, {WS_FLAG2+128}"); e(f"s_mov_b32 s{sT2}, {WS_FLAG0}")
        e(f"s_mov_b32 s{sCNT}, 0")
        a.label("L_ep_poll")
        e(f"buffer_load_dwordx4 v[16:19], v11, {srd(R_WS)}, s{sT0} offen sc1")
        e(f"buffer_load_dwordx4 v[20:23], v11, {srd(R_WS)}, s{sT1} offen sc1")
        e(f"buffer_load_dwordx2 v[24:25], v12, {srd(R_WS)}, s{sT2} offen sc1")
        e("s_waitcnt vmcnt(0)")
        for k in (16,18,20,22,24):
            e(f"v_xor_b32 v{k}, s{sTL}, v{k}"); e(f"v_xor_b32 v{k+1}, s{sTH}, v{k+1}"); e(f"v_or_b32 v{k}, v{k}, v{k+1}")
        e("v_or_b32 v16, v16, v18"); e("v_or_b32 v20, v20, v22"); e("v_or_b32 v16, v16, v20"); e("v_or_b32 v16, v16, v24")
        e("v_cmp_ne_u32 vcc, 0, v16")
        e("s_cbranch_vccz L_epoch_store")
        e("s_sleep 8")
        e(f"s_add_u32 s{sCNT}, s{sCNT}, 1"); e(f"s_cmp_lt_u32 s{sCNT}, 20000"); e("s_cbranch_scc1 L_ep_poll")
        a.label("L_epoch_store")
        e(f"v_mov_b32 v8, s{sTL}"); e(f"v_mov_b32 v9, s{sTH}"); e("v_mov_b32 v10, 0")
        e("s_mov_b64 exec, 1")
        e(f"buffer_store_dwordx2 v[8:9], v10, {srd(R_WS)}, 0 offen sc1")
        e("s_branch L_end")
import struct
def f32(x): return struct.unpack("<I", struct.pack("<f", x))[0]

def build(stop=None, stamps=False):
    from main_p import main_path
    g = Gen(stop, stamps)
    g.prologue()
    main_path(g)
    if stamps:
        e=g.e
        e(f"s_lshl_b32 s{sT0}, s2, 3"); e(f"s_add_u32 s{sT0}, s{sT0}, s{sW}"); e(f"s_lshl_b32 s{sT0}, s{sT0}, 6"); e(f"s_add_u32 s{sT0}, s{sT0}, 0x60000")
        e("v_mov_b32 v1, 0"); e("s_mov_b64 exec, 1")
        for i in range(13):
            e(f"v_mov_b32 v2, s{3+i}"); e(f"buffer_store_dword v2, v1, {srd(R_WS)}, s{sT0} offen offset:{4*i}")
        g.mk_srd(R_A1, P_DBG, 256)
        for i in range(13):
            e(f"v_mov_b32 v2, s{3+i}"); e(f"buffer_atomic_umax v2, v1, {srd(R_A1)}, 0 offen offset:{4*i}")
        e(f"s_not_b32 s{sT1}, s3"); e(f"v_mov_b32 v2, s{sT1}"); e(f"buffer_atomic_umax v2, v1, {srd(R_A1)}, 0 offen offset:52")
    g.e("s_branch L_end")
    g.helper()
    g.a.label("L_end")
    body = g.a.finalize()
    hdr = open(REF).read()
    pre = hdr[:hdr.index("; Override")]
    txt = f"""{pre}; @launch grid=(256,1,1) block=(512,1,1) lds=163840
.amdgcn_target "amdgcn-amd-amdhsa--gfx950"
.text
.globl {KN}
.p2align 8
.type {KN},@function
{KN}:
{body}
    s_endpgm
.section .rodata,"a"
.p2align 6
.amdhsa_kernel {KN}
  .amdhsa_next_free_vgpr 256
  .amdhsa_next_free_sgpr 102
  .amdhsa_accum_offset 256
  .amdhsa_group_segment_fixed_size 0
  .amdhsa_kernarg_size 128
  .amdhsa_user_sgpr_count 2
  .amdhsa_user_sgpr_kernarg_segment_ptr 1
  .amdhsa_system_sgpr_workgroup_id_x 1
.end_amdhsa_kernel
"""
    return txt, g
if __name__ == "__main__":
    import argparse
    ap = argparse.ArgumentParser(); ap.add_argument("out"); ap.add_argument("--stop"); ap.add_argument("--stamps", action="store_true")
    a = ap.parse_args()
    txt, g = build(a.stop, a.stamps)
    open(a.out, "w").write(txt)
    print("lines", txt.count("\n"), "nops inserted", g.a.nnop)
```
